```python
import torch

def _softmax(x, axis=-1):
    return torch.softmax(x, dim=axis)
def _gelu(x):
    return torch.nn.functional.gelu(x, approximate="tanh")
def _silu(x):
    return torch.nn.functional.silu(x)
def _sigmoid(x):
    return torch.sigmoid(x)
def _layernorm(x, axis=-1, eps=1e-5):
    m = x.mean(dim=axis, keepdim=True)
    v = x.var(dim=axis, keepdim=True, unbiased=False)
    return (x - m) / torch.sqrt(v + eps)
def _scatter_add(tgt, idx, src, axis=0):
    return tgt.clone().index_add_(axis, idx, src)
def _segment_sum(src, seg, n):
    out = torch.zeros((n,) + src.shape[1:], dtype=src.dtype)
    return out.index_add_(0, seg, src)
def _pad(x, pw):
    flat = tuple(v for pair in reversed(pw) for v in pair)
    return torch.nn.functional.pad(x, flat)

kernel_name = 'concat_heads__softmax_full_mha__linear_kernel_hedgehog__prompt'

def setup_inputs():

    _w = (lambda a: (lambda t: t.to(torch.bfloat16) if t.is_floating_point() else t)(torch.as_tensor(a)))
    def _A_setup():
        B, S, D = 1, 2048, 640
        return {
            "x": _w((lambda *s: torch.randn(*s, dtype=torch.bfloat16) * 0.2)(B, S, D)),
            "wqkv": _w((lambda *s: torch.randn(*s, dtype=torch.bfloat16) * 0.2)(D, 3 * D)),
            "wo": _w((lambda *s: torch.randn(*s, dtype=torch.bfloat16) * 0.05)(D, D)),
        }
    _A_in = _A_setup()

    def _B_setup():
        B, S, D, H = 1, 2048, 640, 32
        Dh = D // H
        return {
            "x": _w((lambda *s: torch.randn(*s, dtype=torch.bfloat16) * 0.4)(B, S, D)),
            "wqkv": _w((lambda *s: torch.randn(*s, dtype=torch.bfloat16) * 0.4)(D, 3 * D)),
            "w_phi": _w((lambda *s: torch.randn(*s, dtype=torch.bfloat16) * 0.4)(H, Dh, Dh) * (Dh ** -0.5)),
            "wo": _w((lambda *s: torch.randn(*s, dtype=torch.bfloat16) * 0.05)(D, D)),
        }
    _B_in = _B_setup()

    return {
        "A_x": _A_in["x"],
        "A_wqkv": _A_in["wqkv"],
        "A_wo": _A_in["wo"],
        "B_x": _B_in["x"],
        "B_wqkv": _B_in["wqkv"],
        "B_w_phi": _B_in["w_phi"],
        "B_wo": _B_in["wo"],
    }

def reference(A_x, A_wqkv, A_wo, B_x, B_wqkv, B_w_phi, B_wo):
    def _A_ref(x, wqkv, wo):
        B, S, D = x.shape
        H = 32; Dh = D // H
        qkv = (lambda x, *d: x.permute(*d))((x @ wqkv).reshape(B, S, 3, H, Dh), 2, 0, 3, 1, 4)
        q, k, v = qkv[0], qkv[1], qkv[2]
        scale = Dh ** -0.5
        scores = torch.einsum("bhqd,bhkd->bhqk", q, k) * scale
        p = _softmax(scores, axis=-1)
        o = torch.einsum("bhqk,bhkd->bhqd", p, v)
        return (lambda x, *d: x.permute(*d))(o, 0, 2, 1, 3).reshape(B, S, D) @ wo

    def _B_ref(x, wqkv, w_phi, wo):
        B, S, D = x.shape
        H = 32; Dh = D // H
        qkv = (lambda x, *d: x.permute(*d))((x @ wqkv).reshape(B, S, 3, H, Dh), 2, 0, 3, 1, 4)
        q, k, v = qkv[0], qkv[1], qkv[2]
        pq = torch.einsum("bhsd,hdf->bhsf", q, w_phi)
        pk = torch.einsum("bhsd,hdf->bhsf", k, w_phi)
        phi_q = torch.concatenate([_softmax(pq, axis=-1), _softmax(-pq, axis=-1)], axis=-1)
        phi_k = torch.concatenate([_softmax(pk, axis=-1), _softmax(-pk, axis=-1)], axis=-1)
        kv = torch.einsum("bhsf,bhsd->bhfd", phi_k, v)
        z  = torch.einsum("bhsf->bhf", phi_k)
        num = torch.einsum("bhqf,bhfd->bhqd", phi_q, kv)
        den = torch.einsum("bhqf,bhf->bhq", phi_q, z)[..., None] + 1e-6
        o = num / den
        return (lambda x, *d: x.permute(*d))(o, 0, 2, 1, 3).reshape(B, S, D) @ wo

    a = _A_ref(A_x, A_wqkv, A_wo)
    b = _B_ref(B_x, B_wqkv, B_w_phi, B_wo)
    return torch.concatenate([a, b], axis=-1)
```

```python
class Asm:
    def __init__(self):
        self.lines = []
    def __call__(self, s=''):
        for l in s.split('\n'):
            self.lines.append('    ' + l.strip() if l.strip() else '')
    def label(self, name):
        self.lines.append(name + ':')
    def comment(self, s):
        self.lines.append('    ; ' + s)
    def raw(self, s):
        self.lines.append(s)
    def text(self):
        return '\n'.join(self.lines) + '\n'

def vr(base, n=1):
    return f'v{base}' if n == 1 else f'v[{base}:{base+n-1}]'
def sr(base, n=1):
    return f's{base}' if n == 1 else f's[{base}:{base+n-1}]'

KA_AX, KA_AW, KA_AWO, KA_BX, KA_BW, KA_PHI, KA_BWO, KA_OUT, KA_DBG, KA_WS = [8*i for i in range(10)]

HEAD_BYTES = 5*2048*8
QPLANE = 2048*8
WS_QKV = 0
WS_QKV_BYTES = 192*HEAD_BYTES
WS_O = 0x1400000
WS_O_BYTES = 2*128*20*1024
WS_WO = 0x1A00000
WS_WO_BYTES = 2*8*20*5*1024
WS_PHI = 0x1C00000
WS_PHI_BYTES = 32*2*1024
WS_KV = 0x1D00000
WS_KV_BYTES = 32*8*5120

SRD3 = '0x00020000'

def make_srd(a, dst, base_lo, base_hi, nbytes, add=0):
    if add:
        a(f's_add_u32 s{dst}, s{base_lo}, {add}')
        a(f's_addc_u32 s{dst+1}, s{base_hi}, 0')
    else:
        a(f's_mov_b32 s{dst}, s{base_lo}')
        a(f's_mov_b32 s{dst+1}, s{base_hi}')
    a(f's_mov_b32 s{dst+2}, {nbytes}')
    a(f's_mov_b32 s{dst+3}, {SRD3}')

def kernel_head(a, name):
    a.raw(f'.globl {name}')
    a.raw('.p2align 8')
    a.raw(f'.type {name},@function')
    a.raw(f'{name}:')

def kernel_desc(name, vgpr, sgpr=102, accum=None):
    accum = accum or min(256, (vgpr+3)//4*4)
    return f'''.amdhsa_kernel {name}
  .amdhsa_next_free_vgpr {vgpr}
  .amdhsa_next_free_sgpr {sgpr}
  .amdhsa_accum_offset {accum}
  .amdhsa_group_segment_fixed_size 0
  .amdhsa_kernarg_size 80
  .amdhsa_user_sgpr_count 2
  .amdhsa_user_sgpr_kernarg_segment_ptr 1
  .amdhsa_system_sgpr_workgroup_id_x 1
.end_amdhsa_kernel
'''
```

```python
from common import *

NAME1 = 'hh_proj_kernel'
LDS1 = 147456
XS_STRIDE = 16384
W_BASE = 49152
WS_STRIDE = 32768
NSTAGE = 10
CA = 0.22360679774997896 * 1.4426950408889634

import struct
def f32bits(x): return struct.unpack('<I', struct.pack('<f', x))[0]

def k1(diag=False):
    a = Asm()
    stamps = []
    def stamp(tag):
        if not diag: return
        i = len(stamps); stamps.append(tag)
        a(f's_memtime s[{64+2*i}:{65+2*i}]')
    kernel_head(a, NAME1)
    a('s_cmp_ge_u32 s2, 256')
    a('s_cbranch_scc1 L1_end')
    if diag:
        a('s_memrealtime s[96:97]')
    stamp('start')
    a('s_load_dwordx16 s[44:59], s[0:1], 0')
    a('s_load_dwordx4 s[60:63], s[0:1], 64')
    a('v_lshrrev_b32 v1, 6, v0')
    a('v_and_b32 v0, 63, v0')
    a('s_and_b32 s25, s2, 7')
    a('v_readfirstlane_b32 s3, v1')
    a('s_lshr_b32 s26, s2, 3')
    a('s_lshr_b32 s20, s25, 2')
    a('s_and_b32 s21, s25, 1')
    a('s_lshl_b32 s21, s21, 3')
    a('s_and_b32 s27, s26, 7')
    a('s_add_u32 s21, s21, s27')
    a('s_lshr_b32 s22, s25, 1')
    a('s_and_b32 s22, s22, 1')
    a('s_lshl_b32 s22, s22, 2')
    a('s_lshr_b32 s27, s26, 3')
    a('s_add_u32 s22, s22, s27')
    a('s_lshl_b32 s23, s21, 7')
    a('s_mul_i32 s24, s22, 480')
    a('s_waitcnt lgkmcnt(0)')
    a('s_cmp_eq_u32 s20, 0')
    a('s_cselect_b32 s4, s44, s50')
    a('s_cselect_b32 s5, s45, s51')
    a('s_cselect_b32 s6, s46, s52')
    a('s_cselect_b32 s7, s47, s53')
    make_srd(a, 8, 4, 5, 2048*1280)
    make_srd(a, 12, 6, 7, 640*3840)
    make_srd(a, 16, 62, 63, WS_QKV_BYTES, add=WS_QKV)
    a('s_cmp_ge_u32 s3, 4')
    a('s_cbranch_scc1 L1_loader')

    XA = 4
    WA = 8
    XF = 16
    WF = 32
    ACC = 64
    a('s_lshr_b32 s25, s3, 1')
    a('s_and_b32 s26, s3, 1')
    a('v_and_b32 v1, 31, v0')
    a('v_lshrrev_b32 v2, 5, v0')
    a('v_bfe_u32 v3, v0, 1, 3')
    a('v_xor_b32 v3, v3, v2')
    a('s_lshl_b32 s27, s25, 13')
    a('v_lshlrev_b32 v16, 7, v1')
    a('v_lshl_add_u32 v16, v3, 4, v16')
    a('v_add_u32 v16, s27, v16')
    for ks in range(4):
        a(f'v_xor_b32 v{XA+ks}, {32*ks}, v16')
    a('v_bfe_u32 v17, v0, 2, 2')
    a('v_lshlrev_b32 v18, 3, v2')
    a('v_add_u32 v18, v18, v17')
    a('v_lshlrev_b32 v18, 9, v18')
    a('v_and_b32 v19, 1, v0')
    a('v_lshl_add_u32 v18, v19, 7, v18')
    a('v_bfe_u32 v19, v0, 4, 1')
    a('v_lshl_add_u32 v19, v17, 1, v19')
    a('v_lshl_add_u32 v18, v19, 4, v18')
    a('v_bfe_u32 v19, v0, 1, 1')
    a('v_lshl_add_u32 v18, v19, 3, v18')
    a('s_lshl_b32 s27, s26, 8')
    a(f's_add_u32 s27, s27, {W_BASE}')
    a('v_add_u32 v18, s27, v18')
    for tt in range(4):
        a(f'v_xor_b32 v{WA+tt}, {32*tt}, v18')
        a(f'v_add_u32 v{WA+4+tt}, 0x10000, v{WA+tt}')
    for i in range(128):
        a(f'v_mov_b32 v{ACC+i}, 0')

    def reads(n):
        s, ks = divmod(n, 4)
        slot = s % 3
        st = n % 2
        out = []
        xr = [f'ds_read_b128 {vr(XF+8*st+4*tm,4)}, v{XA+ks} offset:{slot*XS_STRIDE+tm*4096}' for tm in range(2)]
        wr = []
        for tt in range(4):
            base = WA+tt if slot < 2 else WA+4+tt
            off0 = (slot*WS_STRIDE if slot < 2 else 0) + ks*8192
            for idx in range(2):
                wr.append(f'ds_read_b64_tr_b16 {vr(WF+16*st+4*tt+2*idx,2)}, v{base} offset:{off0+idx*2048}')
        out = wr[0:2] + xr + wr[2:]
        return out

    a('s_barrier')
    stamp('B0')
    for r in reads(0): a(r)
    NST = 4*NSTAGE
    for n in range(NST):
        s, ks = divmod(n, 4)
        st = n % 2
        a('s_waitcnt lgkmcnt(0)')
        if ks == 3 and s+1 < NSTAGE:
            a('s_barrier')
            stamp(f'B{s+1}')
        nxt = reads(n+1) if n+1 < NST else []
        m = 0
        for tt in range(4):
            for tm in range(2):
                acc = ACC + 64*tm + 16*tt
                a(f'v_mfma_f32_32x32x16_bf16 {vr(acc,16)}, {vr(WF+16*st+4*tt,4)}, {vr(XF+8*st+4*tm,4)}, {vr(acc,16)}')
                for r in nxt[2*m:2*m+2]: a(r)
                m += 1
    stamp('loopend')
    a('s_mul_i32 s27, s20, 96')
    a('s_mul_i32 s28, s22, 12')
    a('s_add_u32 s27, s27, s28')
    a('s_mul_i32 s28, s26, 6')
    a('s_add_u32 s28, s28, s27')
    a('s_mul_i32 s29, s22, 12')
    a('s_mul_i32 s30, s26, 6')
    a('s_add_u32 s29, s29, s30')
    a('v_mul_u32_u24 v4, 3, v2')
    a('v_add_u32 v5, s28, v4')
    a(f's_mov_b32 s30, {HEAD_BYTES}')
    a('v_mul_lo_u32 v5, v5, s30')
    a('s_lshl_b32 s31, s25, 6')
    a('s_add_u32 s31, s31, s23')
    a('v_add_u32 v6, s31, v1')
    a('v_lshl_add_u32 v5, v6, 3, v5')
    a('v_add_u32 v4, s29, v4')
    a('s_nop 7')
    a('s_cmp_lg_u32 s20, 0')
    a('s_cbranch_scc1 L1_noscale')
    a('s_cmp_ge_u32 s22, 3')
    a('s_cbranch_scc1 L1_noscale')
    a(f'v_mov_b32 v7, 0x{f32bits(CA):08x}')
    for i3 in range(3):
        a(f'v_add_u32 v6, {i3}, v4')
        a('v_cmp_gt_u32 vcc, 32, v6')
        a('s_nop 1')
        a(f'v_cndmask_b32 v{12+i3}, 1.0, v7, vcc')
    for tm in range(2):
        for i3 in range(3):
            for e in range(20):
                r = ACC + 64*tm + 20*i3 + e
                a(f'v_mul_f32 v{r}, v{r}, v{12+i3}')
    a.label('L1_noscale')
    stg = 16
    cnt = 0
    for tm in range(2):
        for i3 in range(3):
            base = stg + 10*(cnt % 4); cnt += 1
            for dd in range(10):
                r = ACC + 64*tm + 20*i3 + 2*dd
                a(f'v_cvt_pk_bf16_f32 v{base+dd}, v{r}, v{r+1}')
            for p in range(5):
                a(f's_mov_b32 s32, {i3*HEAD_BYTES + p*QPLANE}')
                a(f'buffer_store_dwordx2 {vr(base+2*p,2)}, v5, s[16:19], s32 offen offset:{tm*256}')
    if diag:
        a('s_waitcnt vmcnt(0)')
        stamp('end')
        a('s_memrealtime s[98:99]')
        a('s_waitcnt lgkmcnt(0)')
        make_srd(a, 16, 62, 63, 0x100000, add=0x3000000)
        a('s_lshl_b32 s25, s2, 2')
        a('s_add_u32 s25, s25, s3')
        a('s_lshl_b32 s25, s25, 7')
        a('v_mov_b32 v1, s25')
        for i in range(len(stamps)):
            a(f's_sub_u32 s26, s{64+2*i}, s64')
            a('v_mov_b32 v2, s26')
            a(f'buffer_store_dword v2, v1, s[16:19], 0 offen offset:{4*i}')
        a('s_sub_u32 s26, s98, s96')
        a('v_mov_b32 v2, s26')
        a(f'buffer_store_dword v2, v1, s[16:19], 0 offen offset:{4*len(stamps)}')
        a('v_mov_b32 v2, s96')
        a(f'buffer_store_dword v2, v1, s[16:19], 0 offen offset:{4*len(stamps)+4}')
        a('s_waitcnt vmcnt(0)')
        k1.stamps = stamps
    a('s_endpgm')

    a.label('L1_loader')
    a('s_sub_u32 s3, s3, 4')
    VXE, VXO, VWE, VWO = 4, 5, 6, 7
    a('v_lshrrev_b32 v1, 3, v0')
    a('v_and_b32 v2, 7, v0')
    a('v_lshrrev_b32 v3, 4, v0')
    a('v_xor_b32 v3, v2, v3')
    a('s_lshl_b32 s25, s3, 5')
    a('s_add_u32 s25, s25, s23')
    a('v_add_u32 v8, s25, v1')
    a('v_mul_u32_u24 v8, 1280, v8')
    a(f'v_lshl_add_u32 v{VXE}, v3, 4, v8')
    a('v_xor_b32 v3, 4, v3')
    a(f'v_lshl_add_u32 v{VXO}, v3, 4, v8')
    a('v_lshrrev_b32 v1, 5, v0')
    a('s_lshl_b32 s25, s3, 4')
    a('v_add_u32 v8, s25, v1')
    a('v_mul_u32_u24 v8, 3840, v8')
    a('v_add_u32 v8, s24, v8')
    a('v_bfe_u32 v9, v0, 4, 1')
    a('v_mul_u32_u24 v9, 240, v9')
    a('v_add_u32 v8, v8, v9')
    a('v_bfe_u32 v9, v0, 3, 1')
    a('v_mul_u32_u24 v9, 120, v9')
    a('v_add_u32 v8, v8, v9')
    a('v_lshlrev_b32 v1, 1, v1')
    a('v_xor_b32 v3, v2, v1')
    a(f'v_lshl_add_u32 v{VWE}, v3, 4, v8')
    a('v_xor_b32 v3, 4, v3')
    a(f'v_lshl_add_u32 v{VWO}, v3, 4, v8')
    a('s_lshl_b32 s26, s3, 12')
    a('s_lshl_b32 s27, s3, 13')
    a(f's_add_u32 s27, s27, {W_BASE}')

    def dma(s):
        slot = s % 3
        a(f's_add_u32 m0, s26, {slot*XS_STRIDE}')
        for uu in range(4):
            a(f's_mov_b32 s28, {s*128 + uu*(8*1280-1024)}')
            a(f'buffer_load_dwordx4 v{VXE if uu%2==0 else VXO}, s[8:11], s28 offen offset:{uu*1024} lds')
        for half in range(2):
            a(f's_add_u32 m0, s27, {slot*WS_STRIDE + half*4096}')
            for q in range(4):
                u = half*4+q
                a(f's_mov_b32 s28, {s*64*3840 + u*7680 - q*1024}')
                a(f'buffer_load_dwordx4 v{VWE if u%2==0 else VWO}, s[12:15], s28 offen offset:{q*1024} lds')
    dma(0); dma(1)
    a('s_waitcnt vmcnt(12)')
    a('s_barrier')
    dma(2)
    NX = 0
    for s in range(1, NSTAGE):
        if s <= NSTAGE-2:
            a('s_waitcnt vmcnt(12)')
        else:
            a(f's_waitcnt vmcnt({NX})')
        a('s_barrier')
        if s+2 < NSTAGE:
            dma(s+2)
        if s == NSTAGE-3:
            pass
    a('s_lshl_b32 s25, s2, 2')
    a('s_add_u32 s25, s25, s3')
    a('v_lshrrev_b32 v1, 4, v0')
    a('v_and_b32 v2, 15, v0')
    a('v_mul_u32_u24 v4, 10240, v1')
    a('v_lshl_add_u32 v4, v2, 1, v4')
    a('v_lshlrev_b32 v5, 4, v0')
    make_srd(a, 32, 62, 63, WS_WO_BYTES, add=WS_WO)
    def wo_job(tag):
        a('s_cmp_ge_u32 s25, 800')
        a('s_cselect_b32 s28, s56, s48')
        a('s_cselect_b32 s29, s57, s49')
        a('s_cselect_b32 s36, 800, 0')
        a('s_mov_b32 s30, 819200')
        a(f's_mov_b32 s31, {SRD3}')
        a('s_sub_u32 s36, s25, s36')
        a('s_mul_hi_u32 s37, s36, 42949673')
        a('s_mul_i32 s38, s37, 100')
        a('s_sub_u32 s38, s36, s38')
        a('s_mul_hi_u32 s39, s38, 858993460')
        a('s_mul_i32 s40, s39, 5')
        a('s_sub_u32 s40, s38, s40')
        a('s_mul_i32 s37, s37, 160')
        a('s_lshl_b32 s40, s40, 5')
        a('s_add_u32 s37, s37, s40')
        a('s_mul_i32 s39, s39, 40960')
        a('s_add_u32 s37, s37, s39')
        a('s_add_u32 s38, s37, 5120')
        for j in range(8):
            a(f'buffer_load_ushort v{10+j}, v4, s[28:31], s{37 if j<4 else 38} offen offset:{(j%4)*1280}')
        a('s_lshl_b32 s39, s25, 10')
        a('s_waitcnt vmcnt(0)')
        for jj in range(4):
            a(f'v_lshl_or_b32 v{20+jj}, v{11+2*jj}, 16, v{10+2*jj}')
        a(f'buffer_store_dwordx4 v[20:23], v5, s[32:35], s39 offen')
    wo_job(0)
    a('s_add_u32 s25, s25, 1024')
    a('s_cmp_ge_u32 s25, 1600')
    a('s_cbranch_scc1 L1_phi')
    a('s_nop 1')
    wo_job(1)
    a.label('L1_phi')
    a('s_lshl_b32 s25, s2, 2')
    a('s_add_u32 s25, s25, s3')
    a('s_cmp_ge_u32 s25, 64')
    a('s_cbranch_scc1 L1_end')
    make_srd(a, 28, 54, 55, 32*800)
    make_srd(a, 32, 62, 63, WS_PHI_BYTES, add=WS_PHI)
    a('s_lshr_b32 s36, s25, 1')
    a('s_and_b32 s37, s25, 1')
    a('s_mul_i32 s36, s36, 800')
    a('v_and_b32 v1, 31, v0')
    a('v_lshrrev_b32 v2, 5, v0')
    a('v_subrev_u32 v3, 2, v1')
    a('v_cmp_gt_u32 vcc, 18, v1')
    a('s_nop 1')
    a('v_cndmask_b32 v3, v3, v1, vcc')
    a('v_cmp_gt_u32 s[38:39], 18, v1')
    a('v_and_b32 v4, 30, v1')
    a('v_cmp_eq_u32 vcc, 20, v4')
    a('s_nop 1')
    a('s_or_b64 s[38:39], s[38:39], vcc')
    a('v_lshlrev_b32 v4, 3, v2')
    a('s_cmp_eq_u32 s37, 0')
    a('s_cbranch_scc1 L1_phi_u0')
    a('v_mov_b32 v4, 16')
    a('v_cmp_eq_u32 vcc, 0, v2')
    a('s_nop 1')
    a('s_and_b64 s[38:39], s[38:39], vcc')
    a.label('L1_phi_u0')
    a('v_mul_u32_u24 v4, 40, v4')
    a('v_lshl_add_u32 v4, v3, 1, v4')
    a('v_mov_b32 v6, 0x40000000')
    a('v_cndmask_b32 v4, v6, v4, s[38:39]')
    for j in range(8):
        a(f'buffer_load_ushort v{10+j}, v4, s[28:31], s36 offen offset:{j*40}')
    a('s_waitcnt vmcnt(0)')
    a('s_cmp_eq_u32 s37, 0')
    a('s_cbranch_scc1 L1_phi_pack')
    for j in range(4, 8):
        a(f'v_mov_b32 v{10+j}, 0')
    a.label('L1_phi_pack')
    for jj in range(4):
        a(f'v_lshl_or_b32 v{20+jj}, v{11+2*jj}, 16, v{10+2*jj}')
    a('s_lshl_b32 s39, s25, 10')
    a(f'buffer_store_dwordx4 v[20:23], v5, s[32:35], s39 offen')
    a.label('L1_end')
    a('s_endpgm')
    return a.text()
```

```python
from common import *
import struct
def f32bits(x): return struct.unpack('<I', struct.pack('<f', x))[0]

NAME2 = 'hh_attn_kernel'
VGPR2 = 192
LDS2 = 163840
SLOT = 41216
VOFF = 20480
VPL = 4128
ONES = 123808
ZERO = 127936
VB0 = 132096
PK0 = 142336
FLAG0 = 163072
PART0 = 2*SLOT
KVT0 = PK0
LOG2E = 1.4426950408889634

Q1, Q2 = 4, 8
O = 12
S = 28
P = 60
KA1 = 68
KA2 = 76
VF = 84
VK, VK2, VV, VKN, VK2N, VVN, VVM, VL16 = 100, 101, 102, 103, 104, 105, 106, 107
X1, X2 = 108, 112
F1, F2 = 116, 120
T = 124
GA = 160

SRD_QKV, SRD_O, SRD_KV, SRD_PHI, SRD_DBG = 8, 12, 16, 20, 24
sHEAD, sBLK, sWAVE, sT0 = 28, 29, 30, 31
sG = 32
sL = 37
sC = 42
sD = 43
sTMP = 44
sSLOT = 60
sGC = 61

def load_rowfrag(a, dst1, dst2, gh_sgpr, vaddr):
    a(f'buffer_load_dwordx2 {vr(dst1,2)}, v{vaddr}, s[{SRD_QKV}:{SRD_QKV+3}], s{gh_sgpr} offen')
    a(f's_add_u32 s{sTMP}, s{gh_sgpr}, {QPLANE}')
    a(f'buffer_load_dwordx2 {vr(dst1+2,2)}, v{vaddr}, s[{SRD_QKV}:{SRD_QKV+3}], s{sTMP} offen')
    a(f'buffer_load_dwordx2 {vr(dst2,2)}, v{vaddr+1}, s[{SRD_QKV}:{SRD_QKV+3}], s{gh_sgpr} offen')

def featmap(a, tag, x1, x2, pk, out):
    EN = T
    t0, t1, t2, t3 = T+10, T+11, T+12, T+13
    a(f'v_mfma_f32_32x32x16_bf16 {vr(pk,16)}, {vr(F1,4)}, {vr(x1,4)}, 0')
    a(f'v_mfma_f32_32x32x16_bf16 {vr(pk,16)}, {vr(F2,4)}, {vr(x2,4)}, {vr(pk,16)}')
    a(f's_mov_b32 s{sTMP}, 0x{f32bits(LOG2E):08x}')
    a('s_nop 15')
    Y = T+14
    for j in range(10):
        a(f'v_mul_f32 v{Y+j}, s{sTMP}, v{pk+j}')
    for j in range(10):
        a(f'v_exp_f32 v{pk+j}, v{Y+j}')
        a(f'v_exp_f32 v{EN+j}, -v{Y+j}')
    def sums():
        a(f'v_add_f32 v{t0}, v{pk}, v{pk+1}')
        a(f'v_add_f32 v{t1}, v{EN}, v{EN+1}')
        for j in range(2, 10):
            a(f'v_add_f32 v{t0}, v{t0}, v{pk+j}')
            a(f'v_add_f32 v{t1}, v{t1}, v{EN+j}')
        a('s_nop 1')
        a(f'v_permlane32_swap_b32 v{t0}, v{t1}')
        a('s_nop 1')
        a(f'v_add_f32 v{t0}, v{t0}, v{t1}')
        a(f'v_mov_b32 v{t1}, v{t0}')
        a('s_nop 1')
        a(f'v_permlane32_swap_b32 v{t0}, v{t1}')
        a('s_nop 1')
    sums()
    a(f'v_min_f32 v{t2}, v{t0}, v{t1}')
    a(f'v_max_f32 v{t3}, v{t0}, v{t1}')
    a(f'v_add_f32 v{t3}, v{t3}, v{t2}')
    a(f's_mov_b32 s{sTMP}, 0x1f800000')
    a(f's_mov_b32 s{sTMP+1}, 0x5f800000')
    a(f'v_cmp_nle_f32 vcc, s{sTMP}, v{t2}')
    a(f'v_cmp_nge_f32 s[{sTMP+2}:{sTMP+3}], s{sTMP+1}, v{t3}')
    a('s_nop 1')
    a(f's_or_b64 vcc, vcc, s[{sTMP+2}:{sTMP+3}]')
    a(f's_cbranch_vccz L2_fm_ok_{tag}')
    a(f'v_max3_f32 v{t0}, v{Y}, v{Y+1}, v{Y+2}')
    a(f'v_min3_f32 v{t1}, v{Y}, v{Y+1}, v{Y+2}')
    for j in range(3, 9, 2):
        a(f'v_max3_f32 v{t0}, v{t0}, v{Y+j}, v{Y+j+1}')
        a(f'v_min3_f32 v{t1}, v{t1}, v{Y+j}, v{Y+j+1}')
    a(f'v_max_f32 v{t0}, v{t0}, v{Y+9}')
    a(f'v_min_f32 v{t1}, v{t1}, v{Y+9}')
    a(f'v_mov_b32 v{t2}, v{t0}')
    a(f'v_mov_b32 v{t3}, v{t1}')
    a(f'v_mov_b32 v{Y+10}, v{t0}')
    a(f'v_mov_b32 v{Y+11}, v{t1}')
    a('s_nop 1')
    a(f'v_permlane32_swap_b32 v{t2}, v{Y+10}')
    a(f'v_permlane32_swap_b32 v{t3}, v{Y+11}')
    a('s_nop 1')
    a(f'v_max_f32 v{t2}, v{t2}, v{Y+10}')
    a(f'v_min_f32 v{t3}, v{t3}, v{Y+11}')
    for j in range(10):
        a(f'v_sub_f32 v{pk+j}, v{Y+j}, v{t2}')
        a(f'v_sub_f32 v{EN+j}, v{t3}, v{Y+j}')
    for j in range(10):
        a(f'v_exp_f32 v{pk+j}, v{pk+j}')
        a(f'v_exp_f32 v{EN+j}, v{EN+j}')
    a('s_nop 0')
    sums()
    a.label(f'L2_fm_ok_{tag}')
    a(f'v_rcp_f32 v{t0}, v{t0}')
    a(f'v_rcp_f32 v{t1}, v{t1}')
    a('s_nop 0')
    for j in range(10):
        a(f'v_mul_f32 v{pk+j}, v{pk+j}, v{t0}')
        a(f'v_mul_f32 v{EN+j}, v{EN+j}, v{t1}')
    for j in range(5):
        a(f'v_cvt_pk_bf16_f32 v{out+j}, v{pk+2*j}, v{pk+2*j+1}')
        a(f'v_cvt_pk_bf16_f32 v{out+5+j}, v{EN+2*j}, v{EN+2*j+1}')

def store_o(a, tag, branch, eps):
    t0, t1, t2, t3, t4 = T, T+1, T+2, T+3, T+4
    a(f'v_mov_b32 v{t0}, v{O+8}')
    a(f'v_mov_b32 v{t1}, v{O+8}')
    a('s_nop 1')
    a(f'v_permlane32_swap_b32 v{t0}, v{t1}')
    a('s_nop 1')
    if eps:
        a(f'v_add_f32 v{t1}, 0x{f32bits(eps):08x}, v{t1}')
    a(f'v_rcp_f32 v{t0}, v{t1}')
    a('s_nop 0')
    for j in range(12):
        a(f'v_mul_f32 v{O+j}, v{O+j}, v{t0}')
    for j in range(6):
        a(f'v_cvt_pk_bf16_f32 v{T+8+j}, v{O+2*j}, v{O+2*j+1}')
    a(f'v_lshrrev_b32 v{t2}, 5, v0')
    a(f'v_and_b32 v{t3}, 31, v0')
    a(f'v_add_u32 v{t3}, s{sT0}, v{t3}')
    a(f'v_lshrrev_b32 v{t4}, 4, v{t3}')
    a(f'v_mul_u32_u24 v{t4}, 20480, v{t4}')
    a(f'v_and_b32 v{t3}, 15, v{t3}')
    a(f'v_lshl_add_u32 v{t4}, v{t3}, 4, v{t4}')
    a(f's_mul_i32 s{sTMP}, s{sHEAD}, 5')
    a(f's_mov_b32 s{sTMP+1}, {branch*128*20*1024}')
    for aa in range(3):
        q = T+5
        a(f'v_add_u32 v{q}, s{sTMP}, v{t2}')
        if aa: a(f'v_add_u32 v{q}, {2*aa}, v{q}')
        a(f'v_lshrrev_b32 v{T+6}, 1, v{q}')
        a(f'v_lshl_add_u32 v{T+6}, v{T+6}, 8, v{t4}')
        a(f'v_and_b32 v{q}, 1, v{q}')
        a(f'v_lshl_add_u32 v{T+6}, v{q}, 3, v{T+6}')
        if aa == 2:
            a('s_mov_b32 exec_hi, 0')
        a(f'buffer_store_dwordx2 {vr(T+8+2*aa,2)}, v{T+6}, s[{SRD_O}:{SRD_O+3}], s{sTMP+1} offen')
        if aa == 2:
            a('s_mov_b64 exec, -1')

def k2(diag=False):
    a = Asm()
    stamps = []
    def stamp(tag):
        if not diag: return
        i = len(stamps); stamps.append(tag)
        a(f's_memtime s[{64+2*i}:{65+2*i}]')
    kernel_head(a, NAME2)
    a('s_cmp_ge_u32 s2, 256')
    a('s_cbranch_scc1 L2_end')
    if diag: a('s_memrealtime s[96:97]')
    stamp('start')
    a('s_load_dwordx4 s[4:7], s[0:1], 64')
    a('v_lshrrev_b32 v1, 6, v0')
    a('v_and_b32 v0, 63, v0')
    a('s_and_b32 s44, s2, 7')
    a(f'v_readfirstlane_b32 s{sWAVE}, v1')
    a('s_lshr_b32 s45, s2, 3')
    a('s_lshl_b32 s44, s44, 2')
    a('s_lshr_b32 s46, s45, 3')
    a(f's_add_u32 s{sHEAD}, s44, s46')
    a(f's_and_b32 s{sBLK}, s45, 7')
    a(f's_lshl_b32 s{sT0}, s{sBLK}, 8')
    a(f's_lshl_b32 s44, s{sWAVE}, 5')
    a(f's_add_u32 s{sT0}, s{sT0}, s44')
    a('v_and_b32 v1, 31, v0')
    a('v_lshrrev_b32 v2, 5, v0')
    a(f'v_add_u32 v3, s{sT0}, v1')
    a('v_lshlrev_b32 v3, 3, v3')
    a(f'v_mul_u32_u24 v{T}, {2*QPLANE}, v2')
    a(f'v_add_u32 v{T}, v{T}, v3')
    a(f'v_add_u32 v{T+1}, {4*QPLANE}, v3')
    a(f'v_lshlrev_b32 v{VL16}, 4, v0')
    a('s_waitcnt lgkmcnt(0)')
    make_srd(a, SRD_QKV, 6, 7, WS_QKV_BYTES, add=WS_QKV)
    make_srd(a, SRD_O, 6, 7, WS_O_BYTES, add=WS_O)
    make_srd(a, SRD_KV, 6, 7, WS_KV_BYTES, add=WS_KV)
    make_srd(a, SRD_PHI, 6, 7, WS_PHI_BYTES, add=WS_PHI)
    make_srd(a, SRD_DBG, 4, 5, 256)
    a(f's_add_u32 s45, s{sHEAD}, {96+32}')
    a(f's_mul_i32 s45, s45, {HEAD_BYTES}')
    load_rowfrag(a, X1, X2, 45, T)
    a(f's_lshl_b32 s46, s{sHEAD}, 11')
    a(f'buffer_load_dwordx4 {vr(F1,4)}, v{VL16}, s[{SRD_PHI}:{SRD_PHI+3}], s46 offen')
    a(f'buffer_load_dwordx4 {vr(F2,4)}, v{VL16}, s[{SRD_PHI}:{SRD_PHI+3}], s46 offen offset:1024')
    a(f'v_lshrrev_b32 v{T+2}, 4, v0')
    a(f'v_mul_u32_u24 v{T+2}, {QPLANE}, v{T+2}')
    a(f'v_and_b32 v{T+3}, 15, v0')
    a(f'v_lshl_add_u32 v{T+2}, v{T+3}, 4, v{T+2}')
    a(f's_add_u32 s46, s{sHEAD}, {96+64}')
    a(f's_mul_i32 s46, s46, {HEAD_BYTES}')
    a(f's_lshl_b32 s47, s{sT0}, 3')
    a('s_add_u32 s46, s46, s47')
    a(f's_mul_i32 s47, s{sWAVE}, 1280')
    a(f's_add_u32 s47, s47, {VB0}')
    a('s_mov_b32 m0, s47')
    a(f's_add_u32 s48, s46, {4*QPLANE-1024}')
    a(f'buffer_load_dwordx4 v{T+2}, s[{SRD_QKV}:{SRD_QKV+3}], s46 offen lds')
    a('s_mov_b64 exec, 0xffff')
    a(f'buffer_load_dwordx4 v{T+2}, s[{SRD_QKV}:{SRD_QKV+3}], s48 offen offset:1024 lds')
    a('s_mov_b64 exec, -1')
    a(f's_mul_i32 s45, s{sHEAD}, {HEAD_BYTES}')
    load_rowfrag(a, Q1, Q2, 45, T)
    a(f's_add_u32 s45, s{sHEAD}, 32')
    a(f's_mul_i32 s45, s45, {HEAD_BYTES}')
    for i in range(5):
        a(f's_mul_i32 s46, s{sWAVE}, 5')
        a(f's_add_u32 s46, s46, {i}')
        a('s_lshr_b32 s47, s46, 2')
        a('s_and_b32 s46, s46, 3')
        a('s_lshl_b32 s46, s46, 10')
        a('s_cmp_lt_u32 s47, 5')
        a(f's_cselect_b32 s48, 0, {32*HEAD_BYTES - 5*QPLANE}')
        a(f's_cselect_b32 s49, 0, {VOFF - 5*VPL}')
        a(f's_cselect_b32 s50, 0, {VPL-4096}')
        a('s_add_u32 s50, s50, 4096')
        a(f's_mul_i32 s51, s47, {QPLANE}')
        a('s_add_u32 s51, s51, s48')
        a('s_add_u32 s51, s51, s45')
        a(f's_add_u32 s{sG+i}, s51, s46')
        a('s_mul_i32 s51, s47, s50')
        a('s_add_u32 s51, s51, s49')
        a(f's_add_u32 s{sL+i}, s51, s46')
    def dma_chunk():
        for i in range(5):
            a(f's_add_u32 m0, s{sL+i}, s{sSLOT}')
            a(f's_add_u32 s{sTMP}, s{sG+i}, s{sGC}')
            a(f'buffer_load_dwordx4 v{VL16}, s[{SRD_QKV}:{SRD_QKV+3}], s{sTMP} offen lds')
    a(f's_mov_b32 s{sSLOT}, 0')
    a(f's_mov_b32 s{sGC}, 0')
    dma_chunk()
    a(f's_mov_b32 s{sSLOT}, {SLOT}')
    a(f's_mov_b32 s{sGC}, 4096')
    dma_chunk()
    a(f'v_lshlrev_b32 v{T+4}, 3, v0')
    a(f's_lshl_b32 s46, s{sWAVE}, 9')
    a(f'v_add_u32 v{T+4}, s46, v{T+4}')
    a(f'v_mov_b32 v{T+6}, 0x3f80')
    a(f'v_mov_b32 v{T+7}, 0')
    a(f'v_mov_b32 v{T+8}, 0')
    a(f'v_mov_b32 v{T+9}, 0')
    a(f'v_add_u32 v{T+5}, {ONES}, v{T+4}')
    a(f'ds_write_b64 v{T+5}, {vr(T+6,2)}')
    a(f'ds_write_b64 v{T+5}, {vr(T+8,2)} offset:{ZERO-ONES}')
    a('v_and_b32 v1, 31, v0')
    a('v_and_b32 v3, 19, v1')
    a(f'v_bfe_u32 v{T+4}, v1, 2, 1')
    a(f'v_lshl_or_b32 v3, v{T+4}, 3, v3')
    a(f'v_bfe_u32 v{T+4}, v1, 3, 1')
    a(f'v_lshl_or_b32 v3, v{T+4}, 2, v3')
    a('v_lshlrev_b32 v3, 3, v3')
    a(f'v_lshl_add_u32 v{VK}, v2, 13, v3')
    a(f'v_add_u32 v{VK2}, {4*4096}, v3')
    a(f'v_bfe_u32 v{T+4}, v0, 2, 2')
    a(f'v_lshl_add_u32 v{T+4}, v2, 3, v{T+4}')
    a(f'v_lshlrev_b32 v{T+4}, 3, v{T+4}')
    a(f'v_bfe_u32 v{T+5}, v0, 4, 1')
    a(f'v_and_b32 v{T+6}, 3, v0')
    a(f'v_lshl_add_u32 v{T+5}, v{T+5}, 2, v{T+6}')
    a(f'v_mul_u32_u24 v{T+6}, {VPL}, v{T+5}')
    a(f'v_add_u32 v{T+6}, {VOFF}, v{T+6}')
    a(f'v_mov_b32 v{T+7}, {ZERO}')
    a(f'v_mov_b32 v{T+8}, {ONES}')
    a(f'v_cmp_eq_u32 vcc, 5, v{T+5}')
    a('s_nop 1')
    a(f'v_cndmask_b32 v{T+7}, v{T+7}, v{T+8}, vcc')
    a(f'v_cmp_gt_u32 vcc, 5, v{T+5}')
    a('s_nop 1')
    a(f'v_cndmask_b32 v{VV}, v{T+7}, v{T+6}, vcc')
    a(f'v_cndmask_b32 v{VVM}, 0, 1, vcc')
    a(f'v_add_u32 v{VV}, v{VV}, v{T+4}')
    a(f's_mul_i32 s46, s{sWAVE}, 1280')
    a(f's_add_u32 s46, s46, {VB0}')
    a(f'v_lshlrev_b32 v{T+6}, 8, v{T+5}')
    a(f'v_add_u32 v{T+6}, s46, v{T+6}')
    a(f's_lshl_b32 s46, s{sWAVE}, 9')
    a(f'v_add_u32 v{T+8}, s46, v{T+7}')
    a(f'v_cndmask_b32 v{T+6}, v{T+8}, v{T+6}, vcc')
    a(f'v_add_u32 v{T+30}, v{T+6}, v{T+4}')
    a(f's_mul_i32 s46, s{sWAVE}, 2560')
    a(f's_add_u32 s46, s46, {PK0}')
    a('v_mul_u32_u24 v3, 80, v1')
    a(f'v_mul_u32_u24 v{T+6}, 40, v2')
    a(f'v_add3_u32 v{T+31}, v3, v{T+6}, s46')
    a(f'v_lshrrev_b32 v{T+4}, 3, v{T+4}')
    a(f'v_mul_u32_u24 v{T+4}, 80, v{T+4}')
    a(f'v_and_b32 v{T+6}, 1, v0')
    a(f'v_mul_u32_u24 v{T+6}, 40, v{T+6}')
    a(f'v_add_u32 v{T+4}, v{T+4}, v{T+6}')
    a(f'v_bfe_u32 v{T+6}, v0, 4, 1')
    a(f'v_bfe_u32 v{T+7}, v0, 1, 1')
    a(f'v_lshl_add_u32 v{T+6}, v{T+6}, 1, v{T+7}')
    a(f'v_lshl_add_u32 v{T+4}, v{T+6}, 3, v{T+4}')
    a(f'v_add_u32 v{T+32}, s46, v{T+4}')
    for r in (Q2+2, Q2+3, X2+2, X2+3, KA2+2, KA2+3, KA2+6, KA2+7):
        a(f'v_mov_b32 v{r}, 0')
    for j in range(16):
        a(f'v_mov_b32 v{O+j}, 0')
    a('s_waitcnt vmcnt(15)')
    a('v_cmp_gt_u32 vcc, 32, v0')
    a('s_nop 1')
    a(f'v_cndmask_b32 v{X2}, 0, v{X2}, vcc')
    a(f'v_cndmask_b32 v{X2+1}, 0, v{X2+1}, vcc')
    a('s_nop 1')
    PH = P
    featmap(a, 'k', X1, X2, S, PH)
    for j in range(5):
        a(f'ds_write_b64 v{T+31}, {vr(PH+2*j,2)} offset:{8*j}')
    a('s_waitcnt vmcnt(13) lgkmcnt(0)')
    AF = S
    BF = S+16
    for Tt in range(2):
        for t in range(2):
            for idx in range(2):
                a(f'ds_read_b64_tr_b16 {vr(AF+8*Tt+4*t+2*idx,2)}, v{T+32} offset:{32*Tt + (16*t+4*idx)*80}')
    for t in range(2):
        for idx in range(2):
            a(f'ds_read_b64_tr_b16 {vr(BF+4*t+2*idx,2)}, v{T+30} offset:{(16*t+4*idx)*8}')
    a('s_waitcnt lgkmcnt(0)')
    KV0, KV1 = VF, T
    a(f'v_mfma_f32_32x32x16_bf16 {vr(KV0,16)}, {vr(AF,4)}, {vr(BF,4)}, 0')
    a(f'v_mfma_f32_32x32x16_bf16 {vr(KV1,16)}, {vr(AF+8,4)}, {vr(BF,4)}, 0')
    a(f'v_mfma_f32_32x32x16_bf16 {vr(KV0,16)}, {vr(AF+4,4)}, {vr(BF+4,4)}, {vr(KV0,16)}')
    a(f'v_mfma_f32_32x32x16_bf16 {vr(KV1,16)}, {vr(AF+12,4)}, {vr(BF+4,4)}, {vr(KV1,16)}')
    a(f's_mul_i32 s46, s{sWAVE}, 5120')
    a(f's_add_u32 s46, s46, {PART0}')
    a(f'v_add_u32 v{T+29}, s46, v{VL16}')
    a('s_nop 15')
    for qd in range(4):
        a(f'ds_write_b128 v{T+29}, {vr(KV0+4*qd,4)} offset:{1024*qd}')
    a(f'ds_write_b128 v{T+29}, {vr(KV1,4)} offset:4096')
    a('s_waitcnt lgkmcnt(0)')
    a('s_barrier')
    stamp('P1')
    a(f's_cmp_ge_u32 s{sWAVE}, 5')
    a('s_cbranch_scc1 L2_noreduce')
    a(f's_lshl_b32 s46, s{sWAVE}, 10')
    a(f's_add_u32 s46, s46, {PART0}')
    a(f'v_add_u32 v{T+29}, s46, v{VL16}')
    for w in range(8):
        a(f'ds_read_b128 {vr(S+4*w,4)}, v{T+29} offset:{5120*w}')
    a('s_waitcnt lgkmcnt(0)')
    for w in range(1, 8):
        for j in range(4):
            a(f'v_add_f32 v{S+j}, v{S+j}, v{S+4*w+j}')
    a(f's_lshl_b32 s46, s{sHEAD}, 3')
    a(f's_add_u32 s46, s46, s{sBLK}')
    a('s_mul_i32 s46, s46, 5120')
    a(f's_lshl_b32 s47, s{sWAVE}, 10')
    a('s_add_u32 s46, s46, s47')
    a(f'buffer_store_dwordx4 {vr(S,4)}, v{VL16}, s[{SRD_KV}:{SRD_KV+3}], s46 offen sc1')
    a.label('L2_noreduce')
    a('v_cmp_gt_u32 vcc, 32, v0')
    a('s_waitcnt vmcnt(5) lgkmcnt(0)')
    a('s_nop 0')
    a(f'v_cndmask_b32 v{Q2}, 0, v{Q2}, vcc')
    a(f'v_cndmask_b32 v{Q2+1}, 0, v{Q2+1}, vcc')
    a('s_barrier')
    stamp('X0')
    a(f's_mov_b32 s{sSLOT}, {2*SLOT}')
    a(f's_mov_b32 s{sGC}, 8192')
    dma_chunk()
    def kreads(tile, st, nxt):
        vk, vk2 = (VKN, VK2N) if nxt else (VK, VK2)
        off = tile*256
        return [f'ds_read_b64 {vr(KA1+4*st,2)}, v{vk} offset:{off}',
                f'ds_read_b64 {vr(KA1+4*st+2,2)}, v{vk} offset:{off+4096}',
                f'ds_read_b64 {vr(KA2+4*st,2)}, v{vk2} offset:{off}']
    def vreads(tile, st, nxt):
        vv = VVN if nxt else VV
        out = []
        for t in range(2):
            for idx in range(2):
                out.append(f'ds_read_b64_tr_b16 {vr(VF+8*st+4*t+2*idx,2)}, v{vv} offset:{(32*tile+16*t+4*idx)*8}')
        return out
    def qk1(st): return f'v_mfma_f32_32x32x16_bf16 {vr(S+16*st,16)}, {vr(KA1+4*st,4)}, {vr(Q1,4)}, 0'
    def qk2(st): return f'v_mfma_f32_32x32x16_bf16 {vr(S+16*st,16)}, {vr(KA2+4*st,4)}, {vr(Q2,4)}, {vr(S+16*st,16)}'
    def pv(t, st): return f'v_mfma_f32_32x32x16_bf16 {vr(O,16)}, {vr(VF+8*st+4*t,4)}, {vr(P+4*t,4)}, {vr(O,16)}'
    for r in kreads(0, 0, False): a(r)
    for j in range(4, 8): a(f'v_mov_b32 v{P+j}, 0')
    for j in range(8): a(f'v_mov_b32 v{VF+8+j}, 0')
    a('s_waitcnt lgkmcnt(0)')
    a(qk1(0)); a(qk2(0))
    for r in kreads(1, 1, False): a(r)
    for r in vreads(0, 0, False): a(r)
    a(f's_mov_b32 s{sC}, 0')
    a('s_nop 7')
    a.raw('.p2align 6')
    a.label('L2_loop')
    for i in range(16):
        st = i % 2
        sn = 1 - st
        s = S + 16*st
        e = lambda j: f'v_exp_f32 v{s+j}, v{s+j}'
        c = lambda j: f'v_cvt_pk_bf16_f32 v{P+j}, v{s+2*j}, v{s+2*j+1}'
        if i == 14:
            a(f's_cmp_eq_u32 s{sC}, 3')
            a('s_cbranch_scc1 L2_nobar')
            a(f's_cmp_eq_u32 s{sC}, 0')
            a('s_cbranch_scc1 L2_w5')
            a('s_waitcnt vmcnt(0)')
            a('s_branch L2_bar')
            a.label('L2_w5')
            a('s_waitcnt vmcnt(5)')
            a.label('L2_bar')
            a('s_barrier')
            a(f's_cmp_eq_u32 s{sC}, 0')
            a('s_cbranch_scc0 L2_noatom')
            a(f's_cmp_eq_u32 s{sWAVE}, 0')
            a('s_cbranch_scc0 L2_noatom')
            a(f's_lshl_b32 s{sTMP}, s{sHEAD}, 2')
            a(f'v_mov_b32 v{T}, s{sTMP}')
            a(f'v_mov_b32 v{T+1}, 1')
            a('s_mov_b64 exec, 1')
            a(f'buffer_atomic_add v{T+1}, v{T}, s[{SRD_DBG}:{SRD_DBG+3}], 0 offen sc1')
            a('s_mov_b64 exec, -1')
            a.label('L2_noatom')
            a(f's_cmp_eq_u32 s{sC}, 1')
            a('s_cbranch_scc0 L2_nodma')
            a(f's_mov_b32 s{sSLOT}, 0')
            a(f's_mov_b32 s{sGC}, {3*4096}')
            dma_chunk()
            a.label('L2_nodma')
            a.label('L2_nobar')
            a(f's_mov_b32 s{sD}, {SLOT}')
            a(f's_cmp_eq_u32 s{sC}, 2')
            a(f's_cselect_b32 s{sD}, {(-2*SLOT) & 0xffffffff}, s{sD}')
            a(f'v_add_u32 v{VKN}, s{sD}, v{VK}')
            a(f'v_add_u32 v{VK2N}, s{sD}, v{VK2}')
            a(f'v_mul_lo_u32 v{VVN}, v{VVM}, s{sD}')
            a(f'v_add_u32 v{VVN}, v{VVN}, v{VV}')
        kr = kreads((i+2) % 16, st, i+2 >= 16)
        vrd = vreads((i+1) % 16, sn, i+1 >= 16)
        a('s_waitcnt lgkmcnt(0)')
        a(qk1(sn))
        for r in kr: a(r)
        a(e(0)); a(e(1)); a(e(2)); a(e(3)); a(c(0))
        a(pv(1, sn))
        a(e(4)); a(c(1)); a(e(5)); a(e(6)); a(e(7)); a(c(2))
        a(qk2(sn))
        for r in vrd: a(r)
        a(e(8)); a(c(3)); a(e(9)); a(e(10)); a(e(11)); a(c(4))
        a(pv(0, st))
        a(e(12)); a(c(5)); a(e(13)); a(e(14)); a(e(15)); a(c(6)); a(c(7))
    a(f'v_mov_b32 v{VK}, v{VKN}')
    a(f'v_mov_b32 v{VK2}, v{VK2N}')
    a(f'v_mov_b32 v{VV}, v{VVN}')
    a(f's_add_u32 s{sC}, s{sC}, 1')
    a(f's_cmp_lt_u32 s{sC}, 4')
    a('s_cbranch_scc1 L2_loop')
    stamp('loopend')
    a('v_and_b32 v1, 31, v0')
    a('v_lshrrev_b32 v2, 5, v0')
    a(f'v_add_u32 v3, s{sT0}, v1')
    a('v_lshlrev_b32 v3, 3, v3')
    a(f'v_mul_u32_u24 v{T}, {2*QPLANE}, v2')
    a(f'v_add_u32 v{T}, v{T}, v3')
    a(f'v_add_u32 v{T+1}, {4*QPLANE}, v3')
    a(f's_add_u32 s45, s{sHEAD}, 96')
    a(f's_mul_i32 s45, s45, {HEAD_BYTES}')
    load_rowfrag(a, X1, X2, 45, T)
    a('s_waitcnt lgkmcnt(0)')
    a(pv(1, 1))
    a('s_nop 15')
    t0, t1, t2 = T+2, T+3, T+4
    a(f'v_mov_b32 v{t0}, v{O+8}')
    a(f'v_mov_b32 v{t1}, v{O+8}')
    a(f'v_mov_b32 v{t2}, 0')
    a(f'v_permlane32_swap_b32 v{t0}, v{t1}')
    for j in range(12):
        a(f'v_fma_f32 v{t2}, v{O+j}, 0, v{t2}')
    a(f's_mov_b32 s{sTMP}, 0x1f800000')
    a(f's_mov_b32 s{sTMP+1}, 0x5f800000')
    a(f'v_cmp_nle_f32 vcc, s{sTMP}, v{t1}')
    a(f'v_cmp_nge_f32 s[{sTMP+2}:{sTMP+3}], s{sTMP+1}, v{t1}')
    a(f'v_cmp_u_f32 s[{sTMP+4}:{sTMP+5}], v{t2}, v{t2}')
    a('s_nop 1')
    a(f's_or_b64 vcc, vcc, s[{sTMP+2}:{sTMP+3}]')
    a(f's_or_b64 vcc, vcc, s[{sTMP+4}:{sTMP+5}]')
    a(f's_cmp_lg_u64 vcc, 0')
    a(f's_cselect_b32 s{sTMP}, 1, 0')
    a(f'v_mov_b32 v{t0}, s{sTMP}')
    a(f's_lshl_b32 s{sTMP+1}, s{sWAVE}, 2')
    a(f's_add_u32 s{sTMP+1}, s{sTMP+1}, {FLAG0}')
    a(f'v_mov_b32 v{t1}, s{sTMP+1}')
    a(f'ds_write_b32 v{t1}, v{t0}')
    a(f's_cmp_eq_u32 s{sWAVE}, 0')
    a('s_cbranch_scc0 L2_nopoll')
    a(f's_lshl_b32 s{sTMP}, s{sHEAD}, 2')
    a(f'v_mov_b32 v{t0}, s{sTMP}')
    a(f's_mov_b32 s{sTMP+1}, 0')
    a.label('L2_poll')
    a(f'buffer_load_dword v{t1}, v{t0}, s[{SRD_DBG}:{SRD_DBG+3}], 0 offen sc1')
    a('s_waitcnt vmcnt(0)')
    a(f'v_readfirstlane_b32 s{sTMP+2}, v{t1}')
    a(f's_add_u32 s{sTMP+1}, s{sTMP+1}, 1')
    a(f's_cmp_ge_u32 s{sTMP+2}, 8')
    a('s_cbranch_scc1 L2_nopoll')
    a(f's_cmp_lt_u32 s{sTMP+1}, 0x400000')
    a('s_cbranch_scc0 L2_nopoll')
    a('s_sleep 2')
    a('s_branch L2_poll')
    a.label('L2_nopoll')
    a('s_waitcnt lgkmcnt(0)')
    a('s_barrier')
    stamp('E1')
    a(f'v_mov_b32 v{t1}, {FLAG0}')
    a(f'ds_read_b128 {vr(S,4)}, v{t1}')
    a(f'ds_read_b128 {vr(S+4,4)}, v{t1} offset:16')
    a(f's_cmp_ge_u32 s{sWAVE}, 5')
    a('s_cbranch_scc1 L2_nogather')
    a(f's_mul_i32 s46, s{sHEAD}, {8*5120}')
    a(f's_lshl_b32 s47, s{sWAVE}, 10')
    a('s_add_u32 s46, s46, s47')
    for b in range(8):
        a(f'buffer_load_dwordx4 {vr(GA+4*b,4)}, v{VL16}, s[{SRD_KV}:{SRD_KV+3}], s46 offen sc1')
        a('s_add_u32 s46, s46, 5120')
    a.label('L2_nogather')
    a('s_waitcnt lgkmcnt(0)')
    for j in range(1, 8):
        a(f'v_or_b32 v{S}, v{S}, v{S+j}')
    a('s_nop 0')
    a(f'v_readfirstlane_b32 s{sTMP}, v{S}')
    a(f's_cmp_lg_u32 s{sTMP}, 0')
    a('s_cbranch_scc1 L2_slow')
    a.label('L2_adone')
    store_o(a, 'a', 0, None)
    a(f's_cmp_ge_u32 s{sWAVE}, 5')
    a('s_cbranch_scc1 L2_nosum')
    a('s_waitcnt vmcnt(3)')
    for b in range(1, 8):
        for j in range(4):
            a(f'v_add_f32 v{GA+j}, v{GA+j}, v{GA+4*b+j}')
    a(f'v_cvt_pk_bf16_f32 v{T+20}, v{GA}, v{GA+1}')
    a(f'v_cvt_pk_bf16_f32 v{T+21}, v{GA+2}, v{GA+3}')
    a('v_mul_u32_u24 v3, 48, v0')
    a(f's_lshl_b32 s46, s{sWAVE}, 3')
    a(f's_add_u32 s46, s46, {KVT0}')
    a('v_add_u32 v3, s46, v3')
    a(f'ds_write_b64 v3, {vr(T+20,2)}')
    a(f's_cmp_eq_u32 s{sWAVE}, 4')
    a('s_cbranch_scc0 L2_nosum')
    a(f'v_mov_b32 v{T+20}, 0')
    a(f'v_mov_b32 v{T+21}, 0')
    a(f'ds_write_b64 v3, {vr(T+20,2)} offset:8')
    a.label('L2_nosum')
    a('s_waitcnt vmcnt(3)')
    a('v_cmp_gt_u32 vcc, 32, v0')
    a('s_nop 1')
    a(f'v_cndmask_b32 v{X2}, 0, v{X2}, vcc')
    a(f'v_cndmask_b32 v{X2+1}, 0, v{X2+1}, vcc')
    a('s_nop 1')
    PH = P
    featmap(a, 'q', X1, X2, S, PH)
    a(f'v_mov_b32 v{PH+10}, 0')
    a(f'v_mov_b32 v{PH+11}, 0')
    a('s_waitcnt lgkmcnt(0)')
    a('s_barrier')
    stamp('E2')
    a('v_mul_u32_u24 v3, 48, v0')
    a(f'v_add_u32 v3, {KVT0}, v3')
    for u in range(3):
        a(f'ds_read_b128 {vr(S+4*u,4)}, v3 offset:{16*u}')
    a('s_waitcnt lgkmcnt(0)')
    a(f'v_mfma_f32_32x32x16_bf16 {vr(O,16)}, {vr(S,4)}, {vr(PH,4)}, 0')
    a(f'v_mfma_f32_32x32x16_bf16 {vr(O,16)}, {vr(S+4,4)}, {vr(PH+4,4)}, {vr(O,16)}')
    a(f'v_mfma_f32_32x32x16_bf16 {vr(O,16)}, {vr(S+8,4)}, {vr(PH+8,4)}, {vr(O,16)}')
    a('s_nop 15')
    store_o(a, 'b', 1, 1e-6)
    if diag:
        a('s_waitcnt vmcnt(0)')
        stamp('end')
        a('s_memrealtime s[98:99]')
        a('s_waitcnt lgkmcnt(0)')
        make_srd(a, 16, 6, 7, 0x100000, add=0x3100000)
        a('s_lshl_b32 s44, s2, 3')
        a(f's_add_u32 s44, s44, s{sWAVE}')
        a('s_lshl_b32 s44, s44, 7')
        a('v_mov_b32 v1, s44')
        for i in range(len(stamps)):
            a(f's_sub_u32 s45, s{64+2*i}, s64')
            a('v_mov_b32 v2, s45')
            a(f'buffer_store_dword v2, v1, s[16:19], 0 offen offset:{4*i}')
        a('s_sub_u32 s45, s98, s96')
        a('v_mov_b32 v2, s45')
        a(f'buffer_store_dword v2, v1, s[16:19], 0 offen offset:{4*len(stamps)}')
        a('v_mov_b32 v2, s96')
        a(f'buffer_store_dword v2, v1, s[16:19], 0 offen offset:{4*len(stamps)+4}')
        a('s_waitcnt vmcnt(0)')
        k2.stamps = stamps
    a('s_endpgm')

    a.label('L2_slow')
    M, AL, MT, MT2 = T+14, T+15, T+16, T+17
    a('s_waitcnt vmcnt(0) lgkmcnt(0)')
    for j in range(16):
        a(f'v_mov_b32 v{O+j}, 0')
    a(f'v_mov_b32 v{M}, 0xff7fffff')
    a('v_and_b32 v1, 31, v0')
    a('v_lshrrev_b32 v2, 5, v0')
    a('v_and_b32 v3, 19, v1')
    a(f'v_bfe_u32 v{T+4}, v1, 2, 1')
    a(f'v_lshl_or_b32 v3, v{T+4}, 3, v3')
    a(f'v_bfe_u32 v{T+4}, v1, 3, 1')
    a(f'v_lshl_or_b32 v3, v{T+4}, 2, v3')
    a('v_lshlrev_b32 v3, 3, v3')
    a(f'v_lshl_add_u32 v{VK}, v2, 13, v3')
    a(f'v_add_u32 v{VK2}, {4*4096}, v3')
    a(f'v_bfe_u32 v{T+4}, v0, 2, 2')
    a(f'v_lshl_add_u32 v{T+4}, v2, 3, v{T+4}')
    a(f'v_lshlrev_b32 v{T+4}, 3, v{T+4}')
    a(f'v_bfe_u32 v{T+5}, v0, 4, 1')
    a(f'v_and_b32 v{T+6}, 3, v0')
    a(f'v_lshl_add_u32 v{T+5}, v{T+5}, 2, v{T+6}')
    a(f'v_mul_u32_u24 v{T+6}, {VPL}, v{T+5}')
    a(f'v_add_u32 v{T+6}, {VOFF}, v{T+6}')
    a(f'v_mov_b32 v{T+7}, {ZERO}')
    a(f'v_mov_b32 v{T+8}, {ONES}')
    a(f'v_cmp_eq_u32 vcc, 5, v{T+5}')
    a('s_nop 1')
    a(f'v_cndmask_b32 v{T+7}, v{T+7}, v{T+8}, vcc')
    a(f'v_cmp_gt_u32 vcc, 5, v{T+5}')
    a('s_nop 1')
    a(f'v_cndmask_b32 v{VV}, v{T+7}, v{T+6}, vcc')
    a(f'v_add_u32 v{VV}, v{VV}, v{T+4}')
    for r in (KA2+2, KA2+3):
        a(f'v_mov_b32 v{r}, 0')
    a(f's_mov_b32 s{sC}, 0')
    a.label('L2_slow_chunk')
    a('s_barrier')
    a(f's_mov_b32 s{sSLOT}, 0')
    a(f's_lshl_b32 s{sGC}, s{sC}, 12')
    dma_chunk()
    a('s_waitcnt vmcnt(0)')
    a('s_barrier')
    a(f's_mov_b32 s{sD}, 0')
    a(f'v_mov_b32 v{VKN}, v{VK}')
    a(f'v_mov_b32 v{VK2N}, v{VK2}')
    a(f'v_mov_b32 v{VVN}, v{VV}')
    a.label('L2_slow_tile')
    for r in kreads(0, 0, True): a(r)
    for r in vreads(0, 0, True): a(r)
    a('s_waitcnt lgkmcnt(0)')
    a(qk1(0)); a(qk2(0))
    a('s_nop 15')
    a(f'v_max3_f32 v{MT}, v{S}, v{S+1}, v{S+2}')
    for j in range(3, 15, 2):
        a(f'v_max3_f32 v{MT}, v{MT}, v{S+j}, v{S+j+1}')
    a(f'v_max_f32 v{MT}, v{MT}, v{S+15}')
    a(f'v_mov_b32 v{MT2}, v{MT}')
    a('s_nop 1')
    a(f'v_permlane32_swap_b32 v{MT}, v{MT2}')
    a('s_nop 1')
    a(f'v_max3_f32 v{MT}, v{MT}, v{MT2}, v{M}')
    a(f'v_sub_f32 v{AL}, v{M}, v{MT}')
    a(f'v_exp_f32 v{AL}, v{AL}')
    a(f'v_mov_b32 v{M}, v{MT}')
    for j in range(16):
        a(f'v_sub_f32 v{S+j}, v{S+j}, v{MT}')
    for j in range(16):
        a(f'v_exp_f32 v{S+j}, v{S+j}')
    for j in range(16):
        a(f'v_mul_f32 v{O+j}, v{O+j}, v{AL}')
    for j in range(8):
        a(f'v_cvt_pk_bf16_f32 v{P+j}, v{S+2*j}, v{S+2*j+1}')
    a('s_nop 1')
    a(pv(0, 0)); a(pv(1, 0))
    a('s_nop 15')
    a(f'v_add_u32 v{VKN}, 256, v{VKN}')
    a(f'v_add_u32 v{VK2N}, 256, v{VK2N}')
    a(f'v_add_u32 v{VVN}, 256, v{VVN}')
    a(f's_add_u32 s{sD}, s{sD}, 1')
    a(f's_cmp_lt_u32 s{sD}, 16')
    a('s_cbranch_scc1 L2_slow_tile')
    a(f's_add_u32 s{sC}, s{sC}, 1')
    a(f's_cmp_lt_u32 s{sC}, 4')
    a('s_cbranch_scc1 L2_slow_chunk')
    a('s_branch L2_adone')
    a.label('L2_end')
    a('s_endpgm')
    return a.text()
```

```python
from common import *

NAME3 = 'hh_out_kernel'
VGPR3 = 256
BLOCK3 = 256
LDS3 = 102400 + 20480
STG0 = 102400

def k3(diag=False):
    a = Asm()
    stamps = []
    def stamp(tag):
        if not diag: return
        i = len(stamps); stamps.append(tag)
        a(f's_memtime s[{64+2*i}:{65+2*i}]')
    kernel_head(a, NAME3)
    a('s_cmp_ge_u32 s2, 256')
    a('s_cbranch_scc1 L3_end')
    if diag: a('s_memrealtime s[96:97]')
    stamp('start')
    a('s_load_dwordx2 s[4:5], s[0:1], 56')
    a('s_load_dwordx2 s[6:7], s[0:1], 72')
    a('v_lshrrev_b32 v1, 6, v0')
    a('v_and_b32 v0, 63, v0')
    a('s_and_b32 s25, s2, 7')
    a('v_readfirstlane_b32 s3, v1')
    a('s_lshr_b32 s26, s2, 3')
    a('s_lshr_b32 s20, s25, 2')
    a('s_and_b32 s21, s25, 3')
    a('s_lshl_b32 s21, s21, 2')
    a('s_lshr_b32 s27, s26, 3')
    a('s_add_u32 s21, s21, s27')
    a('s_and_b32 s22, s26, 7')
    a('v_lshlrev_b32 v1, 4, v0')
    a('v_add_u32 v7, 61440, v1')
    a('s_waitcnt lgkmcnt(0)')
    make_srd(a, 8, 6, 7, WS_O_BYTES, add=WS_O)
    make_srd(a, 12, 6, 7, WS_WO_BYTES, add=WS_WO)
    make_srd(a, 16, 4, 5, 2048*1280*2)
    a('s_lshl_b32 s23, s20, 7')
    a('s_lshl_b32 s24, s21, 3')
    a('s_add_u32 s23, s23, s24')
    a('s_lshl_b32 s24, s3, 1')
    a('s_add_u32 s23, s23, s24')
    a('s_mul_i32 s23, s23, 20480')
    a('s_lshl_b32 s24, s20, 3')
    a('s_add_u32 s24, s24, s22')
    a('s_mul_i32 s24, s24, 102400')
    a('s_lshl_b32 s28, s3, 10')
    a('s_add_u32 s24, s24, s28')
    OF = 16
    ACC = 176
    WF = 216
    seq = []
    wi = 0
    for ks in range(20):
        while wi < 25 and 4*wi <= 5*ks+4:
            seq.append(('w', wi)); wi += 1
        seq.append(('o', ks, 0)); seq.append(('o', ks, 1))
    assert wi == 25
    def issue(item):
        if item[0] == 'w':
            i = item[1]
            a(f's_add_u32 m0, s28, {4096*i}')
            a(f's_add_u32 s29, s24, {4096*i}')
            a(f'buffer_load_dwordx4 v1, s[12:15], s29 offen lds')
        else:
            _, ks, tm = item
            a(f's_add_u32 s29, s23, {tm*20480 + ks*1024}')
            a(f'buffer_load_dwordx4 {vr(OF+8*ks+4*tm,4)}, v1, s[8:11], s29 offen')
    GROUPS = [(0,5),(5,10),(10,15),(15,20)]
    issued = 0
    MAXOUT = 56
    def last_needed(ksend):
        last = 0
        for n, it in enumerate(seq):
            if it[0] == 'o' and it[1] < ksend: last = n
            if it[0] == 'w' and 4*it[1] < 5*ksend: last = n
        return last
    def wreads(ks, st):
        out = []
        for ct in range(5):
            off = (ks*5+ct)*1024
            out.append(f'ds_read_b128 {vr(WF+20*st+4*ct,4)}, v1 offset:{off}' if off < 61440 else f'ds_read_b128 {vr(WF+20*st+4*ct,4)}, v7 offset:{off-61440}')
        return out
    for j in range(40): a(f'v_mov_b32 v{ACC+j}, 0')
    while issued < min(len(seq), MAXOUT):
        issue(seq[issued]); issued += 1
    for g, (k0, k1) in enumerate(GROUPS):
        ln = last_needed(k1)
        while issued <= ln:
            issue(seq[issued]); issued += 1
        a(f's_waitcnt vmcnt({issued-1-ln})')
        a('s_barrier')
        stamp(f'g{g}')
        while issued < len(seq) and issued - (ln+1) < MAXOUT:
            issue(seq[issued]); issued += 1
        for r in wreads(k0, k0 % 2): a(r)
        for ks in range(k0, k1):
            st = ks % 2
            nxt = wreads(ks+1, 1-st) if ks+1 < k1 else []
            a('s_waitcnt lgkmcnt(0)')
            m = 0
            for ct in range(5):
                for tm in range(2):
                    acc = ACC + 20*tm + 4*ct
                    a(f'v_mfma_f32_16x16x32_bf16 {vr(acc,4)}, {vr(WF+20*st+4*ct,4)}, {vr(OF+8*ks+4*tm,4)}, {vr(acc,4)}')
                    if m < len(nxt): a(nxt[m])
                    m += 1
    stamp('loopend')
    a('v_and_b32 v2, 15, v0')
    a('v_lshrrev_b32 v3, 4, v0')
    a('v_mul_u32_u24 v2, 160, v2')
    a('v_lshl_add_u32 v2, v3, 3, v2')
    a('s_mul_i32 s28, s3, 5120')
    a(f's_add_u32 s28, s28, {STG0}')
    a('v_add_u32 v2, s28, v2')
    a('s_nop 7')
    for tm in range(2):
        for ct in range(5):
            acc = ACC + 20*tm + 4*ct
            d = 16 + 2*(tm*5+ct)
            a(f'v_cvt_pk_bf16_f32 v{d}, v{acc}, v{acc+1}')
            a(f'v_cvt_pk_bf16_f32 v{d+1}, v{acc+2}, v{acc+3}')
            a(f'ds_write_b64 v2, {vr(d,2)} offset:{tm*2560 + ct*32}')
    a('s_mov_b32 s29, 0x1999999a')
    a('s_lshl_b32 s30, s21, 7')
    a('s_lshl_b32 s31, s3, 5')
    a('s_add_u32 s30, s30, s31')
    a('s_mul_i32 s30, s30, 2560')
    a('s_mul_i32 s31, s20, 1280')
    a('s_add_u32 s30, s30, s31')
    a('s_mul_i32 s31, s22, 160')
    a('s_add_u32 s30, s30, s31')
    for i in range(5):
        a(f'v_add_u32 v4, {64*i}, v0')
        a('v_mul_hi_u32 v5, v4, s29')
        a('v_mul_u32_u24 v6, 10, v5')
        a('v_sub_u32 v6, v4, v6')
        a('v_mul_u32_u24 v5, 2560, v5')
        a(f'v_lshl_add_u32 v{40+i}, v6, 4, v5')
        a(f'v_lshlrev_b32 v4, 4, v4')
        a(f'v_add_u32 v{48+i}, s28, v4')
    a('s_waitcnt lgkmcnt(0)')
    for i in range(5):
        a(f'ds_read_b128 {vr(56+4*i,4)}, v{48+i}')
    for i in range(5):
        a(f's_waitcnt lgkmcnt({4-i})')
        a(f'buffer_store_dwordx4 {vr(56+4*i,4)}, v{40+i}, s[16:19], s30 offen')
    if diag:
        a('s_waitcnt vmcnt(0)')
        stamp('end')
        a('s_memrealtime s[98:99]')
        a('s_waitcnt lgkmcnt(0)')
        make_srd(a, 16, 6, 7, 0x100000, add=0x3200000)
        a('s_lshl_b32 s44, s2, 2')
        a('s_add_u32 s44, s44, s3')
        a('s_lshl_b32 s44, s44, 7')
        a('v_mov_b32 v1, s44')
        for i in range(len(stamps)):
            a(f's_sub_u32 s45, s{64+2*i}, s64')
            a('v_mov_b32 v2, s45')
            a(f'buffer_store_dword v2, v1, s[16:19], 0 offen offset:{4*i}')
        a('s_sub_u32 s45, s98, s96')
        a('v_mov_b32 v2, s45')
        a(f'buffer_store_dword v2, v1, s[16:19], 0 offen offset:{4*len(stamps)}')
        a('v_mov_b32 v2, s96')
        a(f'buffer_store_dword v2, v1, s[16:19], 0 offen offset:{4*len(stamps)+4}')
        a('s_waitcnt vmcnt(0)')
        k3.stamps = stamps
    a.label('L3_end')
    a('s_endpgm')
    return a.text()
```

```python
import sys, importlib
from common import *
import k1
HEADER = open('concat_heads__softmax_full_mha__linear_kernel_hedgehog__prompt.s.ref').read().split('; Override launch')[0]

def build(kernels):
    out = HEADER
    for (name, text, vgpr, grid, block, lds) in kernels:
        out += f'; @launch kernel={name} grid=({grid},1,1) block=({block},1,1) lds={lds}\n'
    out += '.amdgcn_target "amdgcn-amd-amdhsa--gfx950"\n.text\n'
    for (name, text, vgpr, grid, block, lds) in kernels:
        out += text
    out += '.section .rodata,"a"\n'
    for (name, text, vgpr, grid, block, lds) in kernels:
        out += '.p2align 6\n' + kernel_desc(name, vgpr)
    return out

def kernels(which='123', diag=False):
    ks = []
    if '1' in which:
        ks.append((k1.NAME1, k1.k1(diag), 256, 256, 512, k1.LDS1))
    if '2' in which:
        import k2
        ks.append((k2.NAME2, k2.k2(diag), k2.VGPR2, 256, 512, k2.LDS2))
    if '3' in which:
        import k3
        ks.append((k3.NAME3, k3.k3(diag), k3.VGPR3, 256, k3.BLOCK3, k3.LDS3))
    return ks

if __name__ == '__main__':
    which = sys.argv[1] if len(sys.argv) > 1 else '123'
    dst = sys.argv[2] if len(sys.argv) > 2 else 'out.s'
    diag = len(sys.argv) > 3
    open(dst, 'w').write(build(kernels(which, diag)))
    print('wrote', dst)
```

```python
class Asm:
    def __init__(self):
        self.lines = []
    def __call__(self, s=''):
        for l in s.split('\n'):
            self.lines.append('    ' + l.strip() if l.strip() else '')
    def label(self, name):
        self.lines.append(name + ':')
    def comment(self, s):
        self.lines.append('    ; ' + s)
    def raw(self, s):
        self.lines.append(s)
    def text(self):
        return '\n'.join(self.lines) + '\n'

def vr(base, n=1):
    return f'v{base}' if n == 1 else f'v[{base}:{base+n-1}]'
def sr(base, n=1):
    return f's{base}' if n == 1 else f's[{base}:{base+n-1}]'

KA_AX, KA_AW, KA_AWO, KA_BX, KA_BW, KA_PHI, KA_BWO, KA_OUT, KA_DBG, KA_WS = [8*i for i in range(10)]

HEAD_BYTES = 5*2048*8
QPLANE = 2048*8
WS_QKV = 0
WS_QKV_BYTES = 192*HEAD_BYTES
WS_O = 0x1400000
WS_O_BYTES = 2*128*20*1024
WS_WO = 0x1A00000
WS_WO_BYTES = 2*8*20*5*1024
WS_PHI = 0x1C00000
WS_PHI_BYTES = 32*2*1024
WS_KV = 0x1D00000
WS_KV_BYTES = 32*8*5120

SRD3 = '0x00020000'

def make_srd(a, dst, base_lo, base_hi, nbytes, add=0):
    if add:
        a(f's_add_u32 s{dst}, s{base_lo}, {add}')
        a(f's_addc_u32 s{dst+1}, s{base_hi}, 0')
    else:
        a(f's_mov_b32 s{dst}, s{base_lo}')
        a(f's_mov_b32 s{dst+1}, s{base_hi}')
    a(f's_mov_b32 s{dst+2}, {nbytes}')
    a(f's_mov_b32 s{dst+3}, {SRD3}')

def kernel_head(a, name):
    a.raw(f'.globl {name}')
    a.raw('.p2align 8')
    a.raw(f'.type {name},@function')
    a.raw(f'{name}:')

def kernel_desc(name, vgpr, sgpr=102, accum=None):
    accum = accum or min(256, (vgpr+3)//4*4)
    return f'''.amdhsa_kernel {name}
  .amdhsa_next_free_vgpr {vgpr}
  .amdhsa_next_free_sgpr {sgpr}
  .amdhsa_accum_offset {accum}
  .amdhsa_group_segment_fixed_size 0
  .amdhsa_kernarg_size 80
  .amdhsa_user_sgpr_count 2
  .amdhsa_user_sgpr_kernarg_segment_ptr 1
  .amdhsa_system_sgpr_workgroup_id_x 1
.end_amdhsa_kernel
'''

WS_F1 = 0x2000000
WS_F2 = 0x2010000
WS_F3 = 0x2020000
WS_FLG = WS_F1
WS_FLG_BYTES = 0x30000
WS_DIAG = 0x3000000

class VMQ:
    def __init__(self, a):
        self.a = a; self.q = []
    def issue(self, text, tag):
        self.a(text); self.q.append(tag)
    def count_after(self, tags):
        if isinstance(tags, str): tags = (tags,)
        last = max((i for i, t in enumerate(self.q) if t in tags), default=-1)
        return len(self.q) - 1 - last
    def wait(self, tags, extra=''):
        n = self.count_after(tags)
        assert n <= 63, n
        self.a(f's_waitcnt vmcnt({n}){extra}')
    def wait_all(self, extra=''):
        self.a(f's_waitcnt vmcnt(0){extra}'); self.q = []
```

```python
from common import *
import struct
def f32bits(x): return struct.unpack('<I', struct.pack('<f', x))[0]

NAME = 'concat_heads__softmax_full_mha__linear_kernel_hedgehog__prompt_kernel'
LDS = 163840
CA = 0.22360679774997896 * 1.4426950408889634
LOG2E = 1.4426950408889634

sWG, sWAVE = 2, 3
pAX, pAW, pAWO, pBX, pBW, pPHI, pBWO, pOUT, pDBG, pWS = 64, 66, 68, 70, 72, 74, 76, 78, 80, 82
sNONCE, sHEAD, sBLK = 84, 85, 86
sSTAMP = 88
SRD_QKV = 16
SRD_FLG = 96
XS_STRIDE, W_BASE, WS_STRIDE, NSTAGE = 16384, 49152, 32768, 10
F1, F2 = 240, 244
SLOT, VOFF, VPL = 41216, 20480, 4128
ONES, ZERO = 123808, 127936
VB0, PK0, FLAG0 = 132096, 142336, 163072
PART0 = 2*SLOT
KVT0 = PK0
Q1, Q2, O, S, P = 4, 8, 12, 28, 60
KA1, KA2, VF = 68, 76, 84
VK, VK2, VV, VKN, VK2N, VVN, VVM, VL16 = 100, 101, 102, 103, 104, 105, 106, 107
X1, X2 = 108, 112
T = 124
GA = 160
SRD_O, SRD_KV, SRD_WO = 8, 12, 24
sT0 = 31
sG, sL, sC, sD, sTMP, sSLOT, sGC = 32, 37, 42, 43, 44, 60, 61
STG0 = 102400

def kernel(diag=False, force_slow=False):
    a = Asm()
    stamps = []
    def stamp(tag):
        if not diag: return
        i = len(stamps); stamps.append(tag)
        a(f's_memtime s[{sSTAMP}:{sSTAMP+1}]')
        a('s_waitcnt lgkmcnt(0)')
        a(f'v_writelane_b32 v255, s{sSTAMP}, {i}')
    def P1stamp(tag): stamp(tag)

    kernel_head(a, NAME)
    a('s_cmp_ge_u32 s2, 256')
    a('s_cbranch_scc1 L_end')
    a(f's_load_dwordx16 s[{pAX}:{pAX+15}], s[0:1], 0')
    a(f's_load_dwordx4 s[{pDBG}:{pDBG+3}], s[0:1], 64')
    a('v_lshrrev_b32 v1, 6, v0')
    a('v_and_b32 v0, 63, v0')
    a('s_and_b32 s25, s2, 7')
    a(f'v_readfirstlane_b32 s{sWAVE}, v1')
    a('s_lshr_b32 s26, s2, 3')
    if diag:
        a('v_mov_b32 v255, 0')
        a('s_memrealtime s[90:91]')
    a('s_getpc_b64 s[40:41]')
    a.label('L_pc')
    a('s_mul_i32 s42, s26, 12')
    a('v_add_u32 v2, s42, v0')
    a('v_lshlrev_b32 v3, 7, v2')
    a('v_cmp_gt_u32 vcc, 12, v0')
    a('s_mov_b32 s43, L_end-L_pc')
    a('v_cmp_gt_u32 s[44:45], s43, v3')
    a('s_nop 1')
    a('s_and_b64 vcc, vcc, s[44:45]')
    a(f's_cmp_eq_u32 s{sWAVE}, 5')
    a('s_cselect_b64 vcc, vcc, 0')
    a('s_and_saveexec_b64 s[44:45], vcc')
    a('s_cbranch_execz L_nocode')
    a('global_load_dword v254, v3, s[40:41]')
    a.label('L_nocode')
    a('s_mov_b64 exec, s[44:45]')
    stamp('start')
    a('s_lshr_b32 s20, s25, 2')
    a('s_and_b32 s21, s25, 1')
    a('s_lshl_b32 s21, s21, 3')
    a('s_and_b32 s27, s26, 7')
    a('s_add_u32 s21, s21, s27')
    a('s_lshr_b32 s22, s25, 1')
    a('s_and_b32 s22, s22, 1')
    a('s_lshl_b32 s22, s22, 2')
    a('s_lshr_b32 s27, s26, 3')
    a('s_add_u32 s22, s22, s27')
    a('s_lshl_b32 s23, s21, 7')
    a('s_mul_i32 s24, s22, 480')
    a(f's_lshl_b32 s{sHEAD}, s25, 2')
    a('s_lshr_b32 s27, s26, 3')
    a(f's_add_u32 s{sHEAD}, s{sHEAD}, s27')
    a(f's_and_b32 s{sBLK}, s26, 7')
    a('v_and_b32 v1, 31, v0')
    a('v_lshrrev_b32 v2, 5, v0')
    a('v_subrev_u32 v3, 2, v1')
    a('v_cmp_gt_u32 vcc, 18, v1')
    a('v_and_b32 v4, 30, v1')
    a('s_nop 0')
    a('v_cndmask_b32 v3, v3, v1, vcc')
    a('v_cmp_gt_u32 s[38:39], 18, v1')
    a('v_cmp_eq_u32 vcc, 20, v4')
    a('v_lshlrev_b32 v3, 1, v3')
    a('s_nop 0')
    a('s_or_b64 s[38:39], s[38:39], vcc')
    a('v_mul_u32_u24 v4, 320, v2')
    a('v_add_u32 v4, v4, v3')
    a('v_mov_b32 v6, 0x40000000')
    a('v_cndmask_b32 v4, v6, v4, s[38:39]')
    a('v_cmp_eq_u32 vcc, 0, v2')
    a('v_add_u32 v5, 640, v3')
    a('s_nop 0')
    a('s_and_b64 s[38:39], s[38:39], vcc')
    a('v_cndmask_b32 v5, v6, v5, s[38:39]')
    a('s_waitcnt lgkmcnt(0)')
    a('s_cmp_eq_u32 s20, 0')
    a(f's_cselect_b32 s4, s{pAX}, s{pBX}')
    a(f's_cselect_b32 s5, s{pAX+1}, s{pBX+1}')
    a(f's_cselect_b32 s6, s{pAW}, s{pBW}')
    a(f's_cselect_b32 s7, s{pAW+1}, s{pBW+1}')
    make_srd(a, 8, 4, 5, 2048*1280)
    make_srd(a, 12, 6, 7, 640*3840)
    make_srd(a, SRD_QKV, pWS, pWS+1, WS_QKV_BYTES, add=WS_QKV)
    make_srd(a, SRD_FLG, pWS, pWS+1, WS_FLG_BYTES, add=WS_FLG)
    make_srd(a, 52, pPHI, pPHI+1, 32*800)
    a(f's_mul_i32 s56, s{sHEAD}, 800')
    PG = 200
    def phi_loads(vm):
        for j in range(8):
            vm.issue(f'buffer_load_ushort v{PG+j}, v4, s[52:55], s56 offen offset:{j*40}', 'phi')
        for j in range(4):
            vm.issue(f'buffer_load_ushort v{PG+8+j}, v5, s[52:55], s56 offen offset:{j*40}', 'phi')
    def phi_pack():
        for jj in range(4):
            a(f'v_lshl_or_b32 v{F1+jj}, v{PG+1+2*jj}, 16, v{PG+2*jj}')
        for jj in range(2):
            a(f'v_lshl_or_b32 v{F2+jj}, v{PG+9+2*jj}, 16, v{PG+8+2*jj}')
        a(f'v_mov_b32 v{F2+2}, 0')
        a(f'v_mov_b32 v{F2+3}, 0')
    a(f's_cmp_ge_u32 s{sWAVE}, 4')
    a('s_cbranch_scc1 L1_loader')

    XA, WA, XF, WF, ACC = 4, 8, 16, 32, 64
    vm = VMQ(a)
    phi_loads(vm)
    a(f's_lshr_b32 s25, s{sWAVE}, 1')
    a(f's_and_b32 s26, s{sWAVE}, 1')
    a('v_and_b32 v1, 31, v0')
    a('v_lshrrev_b32 v2, 5, v0')
    a('v_bfe_u32 v3, v0, 1, 3')
    a('v_xor_b32 v3, v3, v2')
    a('s_lshl_b32 s27, s25, 13')
    a('v_lshlrev_b32 v16, 7, v1')
    a('v_lshl_add_u32 v16, v3, 4, v16')
    a('v_add_u32 v16, s27, v16')
    for ks in range(4):
        a(f'v_xor_b32 v{XA+ks}, {32*ks}, v16')
    a('v_bfe_u32 v17, v0, 2, 2')
    a('v_lshlrev_b32 v18, 3, v2')
    a('v_add_u32 v18, v18, v17')
    a('v_lshlrev_b32 v18, 9, v18')
    a('v_and_b32 v19, 1, v0')
    a('v_lshl_add_u32 v18, v19, 7, v18')
    a('v_bfe_u32 v19, v0, 4, 1')
    a('v_lshl_add_u32 v19, v17, 1, v19')
    a('v_lshl_add_u32 v18, v19, 4, v18')
    a('v_bfe_u32 v19, v0, 1, 1')
    a('v_lshl_add_u32 v18, v19, 3, v18')
    a('s_lshl_b32 s27, s26, 8')
    a(f's_add_u32 s27, s27, {W_BASE}')
    a('v_add_u32 v18, s27, v18')
    for tt in range(4):
        a(f'v_xor_b32 v{WA+tt}, {32*tt}, v18')
        a(f'v_add_u32 v{WA+4+tt}, 0x10000, v{WA+tt}')
    vm.wait('phi')
    stamp('phi')
    phi_pack()
    def reads(n):
        s, ks = divmod(n, 4)
        slot = s % 3; st = n % 2
        xr = [f'ds_read_b128 {vr(XF+8*st+4*tm,4)}, v{XA+ks} offset:{slot*XS_STRIDE+tm*4096}' for tm in range(2)]
        wr = []
        for tt in range(4):
            base = WA+tt if slot < 2 else WA+4+tt
            off0 = (slot*WS_STRIDE if slot < 2 else 0) + ks*8192
            for idx in range(2):
                wr.append(f'ds_read_b64_tr_b16 {vr(WF+16*st+4*tt+2*idx,2)}, v{base} offset:{off0+idx*2048}')
        return wr[0:2] + xr + wr[2:]
    a('s_barrier')
    stamp('B0')
    for r in reads(0): a(r)
    NST = 4*NSTAGE
    for n in range(NST):
        s, ks = divmod(n, 4)
        st = n % 2
        a('s_waitcnt lgkmcnt(0)')
        if ks == 3 and s+1 < NSTAGE:
            a('s_barrier')
        nxt = reads(n+1) if n+1 < NST else []
        m = 0
        for tt in range(4):
            for tm in range(2):
                acc = ACC + 64*tm + 16*tt
                c = '0' if n == 0 else vr(acc,16)
                a(f'v_mfma_f32_32x32x16_bf16 {vr(acc,16)}, {vr(WF+16*st+4*tt,4)}, {vr(XF+8*st+4*tm,4)}, {c}')
                for r in nxt[2*m:2*m+2]: a(r)
                m += 1
    stamp('P1loop')
    a('s_mul_i32 s27, s20, 96')
    a('s_mul_i32 s29, s22, 12')
    a('s_mul_i32 s30, s26, 6')
    a('s_add_u32 s29, s29, s30')
    a('s_add_u32 s28, s27, s29')
    a('v_mul_u32_u24 v4, 3, v2')
    a('v_add_u32 v5, s28, v4')
    a(f's_mov_b32 s30, {HEAD_BYTES}')
    a('v_mul_lo_u32 v5, v5, s30')
    a('s_lshl_b32 s31, s25, 6')
    a('s_add_u32 s31, s31, s23')
    a('v_add_u32 v6, s31, v1')
    a('v_lshl_add_u32 v5, v6, 3, v5')
    a('v_add_u32 v4, s29, v4')
    a('s_nop 7')
    a('s_cmp_lg_u32 s20, 0')
    a('s_cbranch_scc1 L1_noscale')
    a('s_cmp_ge_u32 s22, 3')
    a('s_cbranch_scc1 L1_noscale')
    a(f'v_mov_b32 v7, 0x{f32bits(CA):08x}')
    for i3 in range(3):
        a(f'v_add_u32 v6, {i3}, v4')
        a('v_cmp_gt_u32 vcc, 32, v6')
        a('s_nop 1')
        a(f'v_cndmask_b32 v{12+i3}, 1.0, v7, vcc')
    for tm in range(2):
        for i3 in range(3):
            for e in range(0, 20, 2):
                r = ACC + 64*tm + 20*i3 + e
                a(f'v_mul_f32 v{r}, v{r}, v{12+i3}')
                a(f'v_mul_f32 v{r+1}, v{r+1}, v{12+i3}')
    a.label('L1_noscale')
    cnt = 0
    for tm in range(2):
        for i3 in range(3):
            base = 16 + 10*(cnt % 4); cnt += 1
            for dd in range(10):
                r = ACC + 64*tm + 20*i3 + 2*dd
                a(f'v_cvt_pk_bf16_f32 v{base+dd}, v{r}, v{r+1}')
            for p in range(5):
                a(f's_mov_b32 s32, {i3*HEAD_BYTES + p*QPLANE}')
                a(f'buffer_store_dwordx2 {vr(base+2*p,2)}, v5, s[{SRD_QKV}:{SRD_QKV+3}], s32 offen offset:{tm*256} sc1')
    a('s_waitcnt vmcnt(0)')
    stamp('P1stored')
    a('s_branch L1_join')

    a.label('L1_loader')
    vm = VMQ(a)
    sLW = 30
    a(f's_sub_u32 s{sLW}, s{sWAVE}, 4')
    make_srd(a, 32, pDBG, pDBG+1, 256)
    a('v_mov_b32 v9, 0')
    a(f's_add_u32 s25, s2, s{sLW}')
    a('s_cmp_lg_u32 s25, 0')
    a('s_cbranch_scc1 L1_nononce')
    a('s_memrealtime s[36:37]')
    a('s_waitcnt lgkmcnt(0)')
    a('s_or_b32 s36, s36, 1')
    a('v_mov_b32 v8, s36')
    a('s_mov_b64 exec, 1')
    a('buffer_store_dword v8, v9, s[32:35], 0 offen sc1')
    a('s_mov_b64 exec, -1')
    a.label('L1_nononce')
    phi_loads(vm)
    VXE, VXO, VWE, VWO, VTX, VTW = 10, 11, 12, 13, 14, 15
    a('v_lshrrev_b32 v1, 3, v0')
    a('v_and_b32 v2, 7, v0')
    a('v_lshrrev_b32 v3, 4, v0')
    a('v_xor_b32 v3, v2, v3')
    a(f's_lshl_b32 s25, s{sLW}, 5')
    a('s_add_u32 s25, s25, s23')
    a('v_add_u32 v8, s25, v1')
    a('v_mul_u32_u24 v8, 1280, v8')
    a(f'v_lshl_add_u32 v{VXE}, v3, 4, v8')
    a('v_xor_b32 v3, 4, v3')
    a(f'v_lshl_add_u32 v{VXO}, v3, 4, v8')
    a('v_lshrrev_b32 v1, 5, v0')
    a(f's_lshl_b32 s25, s{sLW}, 4')
    a('v_add_u32 v8, s25, v1')
    a('v_mul_u32_u24 v8, 3840, v8')
    a('v_add_u32 v8, s24, v8')
    a('v_bfe_u32 v9, v0, 4, 1')
    a('v_mul_u32_u24 v9, 240, v9')
    a('v_add_u32 v8, v8, v9')
    a('v_bfe_u32 v9, v0, 3, 1')
    a('v_mul_u32_u24 v9, 120, v9')
    a('v_add_u32 v8, v8, v9')
    a('v_lshlrev_b32 v1, 1, v1')
    a('v_xor_b32 v3, v2, v1')
    a(f'v_lshl_add_u32 v{VWE}, v3, 4, v8')
    a('v_xor_b32 v3, 4, v3')
    a(f'v_lshl_add_u32 v{VWO}, v3, 4, v8')
    a('s_and_b32 s25, s2, 7')
    a('s_lshr_b32 s26, s2, 3')
    a('s_and_b32 s27, s25, 1')
    a('s_lshl_b32 s27, s27, 5')
    a('s_add_u32 s27, s27, s26')
    a('s_lshl_b32 s27, s27, 5')
    a(f's_lshl_b32 s28, s{sLW}, 3')
    a('s_add_u32 s27, s27, s28')
    a('v_and_b32 v1, 7, v0')
    a(f'v_add_u32 v{VTX}, s27, v1')
    a(f'v_mul_u32_u24 v{VTX}, 1280, v{VTX}')
    a('s_lshr_b32 s27, s25, 1')
    a('s_and_b32 s27, s27, 1')
    a('s_mul_i32 s27, s27, 1920')
    a('s_and_b32 s27, s27, 0xffffff80')
    a('s_mul_i32 s29, s26, 7680')
    a('s_add_u32 s27, s27, s29')
    a('v_add_u32 v1, s28, v1')
    a('v_lshrrev_b32 v2, 4, v1')
    a('v_mul_u32_u24 v2, 3840, v2')
    a('v_and_b32 v1, 15, v1')
    a('v_lshl_add_u32 v2, v1, 7, v2')
    a(f'v_add_u32 v{VTW}, s27, v2')
    a(f's_lshl_b32 s26, s{sLW}, 12')
    a(f's_lshl_b32 s27, s{sLW}, 13')
    a(f's_add_u32 s27, s27, {W_BASE}')
    def touch(s):
        a(f's_mov_b32 s28, {s*128}')
        a(f's_mov_b32 s29, {s*64*3840}')
        a('s_mov_b64 exec, 0xff')
        vm.issue(f'buffer_load_dword v253, v{VTX}, s[8:11], s28 offen', 'touch')
        vm.issue(f'buffer_load_dword v253, v{VTW}, s[12:15], s29 offen', 'touch')
        a('s_mov_b64 exec, -1')
    def dma(s):
        slot = s % 3
        a(f's_add_u32 m0, s26, {slot*XS_STRIDE}')
        for uu in range(4):
            a(f's_mov_b32 s28, {s*128 + uu*(8*1280-1024)}')
            vm.issue(f'buffer_load_dwordx4 v{VXE if uu%2==0 else VXO}, s[8:11], s28 offen offset:{uu*1024} lds', f'dma{s}')
        for half in range(2):
            a(f's_add_u32 m0, s27, {slot*WS_STRIDE + half*4096}')
            for q in range(4):
                u = half*4+q
                a(f's_mov_b32 s28, {s*64*3840 + u*7680 - q*1024}')
                vm.issue(f'buffer_load_dwordx4 v{VWE if u%2==0 else VWO}, s[12:15], s28 offen offset:{q*1024} lds', f'dma{s}')
    TA = 4
    for s in range(TA): touch(s)
    dma(0); dma(1)
    vm.wait('dma0')
    a('s_barrier')
    WJ = 20
    def wo_loads(tag, dst, fid):
        a(f's_cmp_ge_u32 s{fid}, 800')
        a(f's_cselect_b32 s48, s{pBWO}, s{pAWO}')
        a(f's_cselect_b32 s49, s{pBWO+1}, s{pAWO+1}')
        a('s_cselect_b32 s36, 800, 0')
        a('s_mov_b32 s50, 819200')
        a(f's_mov_b32 s51, {SRD3}')
        a(f's_sub_u32 s36, s{fid}, s36')
        a('s_mul_hi_u32 s37, s36, 42949673')
        a('s_mul_i32 s38, s37, 100')
        a('s_sub_u32 s38, s36, s38')
        a('s_mul_hi_u32 s39, s38, 858993460')
        a('s_mul_i32 s40, s39, 5')
        a('s_sub_u32 s40, s38, s40')
        a('s_mul_i32 s37, s37, 160')
        a('s_lshl_b32 s40, s40, 5')
        a('s_add_u32 s37, s37, s40')
        a('s_mul_i32 s39, s39, 40960')
        a('s_add_u32 s37, s37, s39')
        a('s_add_u32 s38, s37, 5120')
        for j in range(8):
            vm.issue(f'buffer_load_ushort v{dst+j}, v4, s[48:51], s{37 if j<4 else 38} offen offset:{(j%4)*1280}', tag)
    for s in range(0, NSTAGE):
        if s > 0:
            vm.wait(f'dma{s}')
            a('s_barrier')
        if s + TA < NSTAGE: touch(s+TA)
        if s + 2 < NSTAGE: dma(s+2)
        if s == 4:
            a('s_lshl_b32 s44, s20, 7')
            a('s_lshl_b32 s45, s22, 4')
            a('s_add_u32 s44, s44, s45')
            a('s_add_u32 s44, s44, s21')
            a('s_lshl_b32 s46, s44, 2')
            a(f's_add_u32 s46, s46, s{sLW}')
            a('s_add_u32 s47, s46, 1024')
            a('v_lshrrev_b32 v1, 4, v0')
            a('v_and_b32 v2, 15, v0')
            a('v_mul_u32_u24 v4, 10240, v1')
            a('v_lshl_add_u32 v4, v2, 1, v4')
            wo_loads('wo0', WJ, 46)
            wo_loads('wo1', WJ+8, 47)
            a('v_mov_b32 v9, 0')
            vm.issue('buffer_load_dword v16, v9, s[32:35], 0 offen sc1', 'nonce')
    stamp('Ldone')
    vm.wait_all()
    stamp('Lwait')
    phi_pack()
    make_srd(a, SRD_WO, pWS, pWS+1, WS_WO_BYTES, add=WS_WO)
    a('v_lshlrev_b32 v5, 4, v0')
    for k, fid in ((0, 46), (1, 47)):
        for jj in range(4):
            a(f'v_lshl_or_b32 v{40+4*k+jj}, v{WJ+8*k+1+2*jj}, 16, v{WJ+8*k+2*jj}')
        a(f's_lshl_b32 s39, s{fid}, 10')
        a(f'buffer_store_dwordx4 {vr(40+4*k,4)}, v5, s[{SRD_WO}:{SRD_WO+3}], s39 offen sc1')
    a(f'v_readfirstlane_b32 s{sNONCE}, v16')
    a(f's_cmp_lg_u32 s{sNONCE}, 0')
    a('s_cbranch_scc1 L1_havenonce')
    a('s_mov_b32 s36, 0')
    a.label('L1_noncepoll')
    a('buffer_load_dword v16, v9, s[32:35], 0 offen sc1')
    a('s_waitcnt vmcnt(0)')
    a(f'v_readfirstlane_b32 s{sNONCE}, v16')
    a('s_add_u32 s36, s36, 1')
    a(f's_cmp_lg_u32 s{sNONCE}, 0')
    a('s_cbranch_scc1 L1_havenonce')
    a('s_cmp_lt_u32 s36, 0x100000')
    a('s_cbranch_scc0 L1_havenonce')
    a('s_sleep 2')
    a('s_branch L1_noncepoll')
    a.label('L1_havenonce')
    a('s_waitcnt vmcnt(0)')

    a.label('L1_join')
    a('s_barrier')
    stamp('S1a')
    def poll(tag, vaddr, nl):
        a(f's_mov_b32 s{sTMP}, 0')
        a.label(f'L_poll_{tag}')
        a(f's_mov_b64 exec, {hex((1 << nl) - 1) if nl < 32 else "-1"}')
        if nl >= 32:
            a(f's_mov_b32 exec_hi, {hex((1 << (nl-32)) - 1)}')
        a(f'buffer_load_dword v{vaddr+1}, v{vaddr}, s[{SRD_FLG}:{SRD_FLG+3}], 0 offen sc1')
        a('s_waitcnt vmcnt(0)')
        a(f'v_cmp_ne_u32 vcc, s{sNONCE}, v{vaddr+1}')
        a('s_mov_b64 exec, -1')
        a(f's_add_u32 s{sTMP}, s{sTMP}, 1')
        a(f's_cbranch_vccz L_polldone_{tag}')
        a(f's_cmp_lt_u32 s{sTMP}, 0x100000')
        a(f's_cbranch_scc0 L_polldone_{tag}')
        a('s_sleep 1')
        a(f's_branch L_poll_{tag}')
        a.label(f'L_polldone_{tag}')
    def set_flag(base, idx_sgpr, vtmp):
        a(f's_lshl_b32 s{sTMP}, s{idx_sgpr}, 7')
        a(f's_add_u32 s{sTMP}, s{sTMP}, {base - WS_FLG}')
        a(f'v_mov_b32 v{vtmp}, s{sTMP}')
        a(f'v_mov_b32 v{vtmp+1}, s{sNONCE}')
        a('s_mov_b64 exec, 1')
        a(f'buffer_store_dword v{vtmp+1}, v{vtmp}, s[{SRD_FLG}:{SRD_FLG+3}], 0 offen sc1')
        a('s_mov_b64 exec, -1')
    a(f's_cmp_eq_u32 s{sWAVE}, 4')
    a('s_cbranch_scc0 L2_nosync1')
    a('s_lshl_b32 s44, s20, 7')
    a('s_lshl_b32 s45, s22, 4')
    a('s_add_u32 s45, s44, s45')
    a('s_add_u32 s45, s45, s21')
    set_flag(WS_F1, 45, T)
    a.label('L2_nosync1')

    a(f's_lshl_b32 s{sT0}, s{sBLK}, 8')
    a(f's_lshl_b32 s44, s{sWAVE}, 5')
    a(f's_add_u32 s{sT0}, s{sT0}, s44')
    a('v_and_b32 v1, 31, v0')
    a('v_lshrrev_b32 v2, 5, v0')
    a(f'v_add_u32 v3, s{sT0}, v1')
    a('v_lshlrev_b32 v3, 3, v3')
    RA = T+34
    a(f'v_mul_u32_u24 v{RA}, {2*QPLANE}, v2')
    a(f'v_add_u32 v{RA}, v{RA}, v3')
    a(f'v_add_u32 v{RA+1}, {4*QPLANE}, v3')
    a(f'v_lshlrev_b32 v{VL16}, 4, v0')
    make_srd(a, SRD_O, pWS, pWS+1, WS_O_BYTES, add=WS_O)
    make_srd(a, SRD_KV, pWS, pWS+1, WS_KV_BYTES, add=WS_KV)
    make_srd(a, SRD_WO, pWS, pWS+1, WS_WO_BYTES, add=WS_WO)
    a(f's_add_u32 s45, s{sHEAD}, 32')
    a(f's_mul_i32 s45, s45, {HEAD_BYTES}')
    for i in range(5):
        a(f's_mul_i32 s46, s{sWAVE}, 5')
        a(f's_add_u32 s46, s46, {i}')
        a('s_lshr_b32 s47, s46, 2')
        a('s_and_b32 s46, s46, 3')
        a('s_lshl_b32 s46, s46, 10')
        a('s_cmp_lt_u32 s47, 5')
        a(f's_cselect_b32 s48, 0, {32*HEAD_BYTES - 5*QPLANE}')
        a(f's_cselect_b32 s49, 0, {VOFF - 5*VPL}')
        a(f's_cselect_b32 s50, 0, {VPL-4096}')
        a('s_add_u32 s50, s50, 4096')
        a(f's_mul_i32 s51, s47, {QPLANE}')
        a('s_add_u32 s51, s51, s48')
        a('s_add_u32 s51, s51, s45')
        a(f's_add_u32 s{sG+i}, s51, s46')
        a('s_mul_i32 s51, s47, s50')
        a('s_add_u32 s51, s51, s49')
        a(f's_add_u32 s{sL+i}, s51, s46')
    VT = T+33
    a(f's_mul_i32 s46, s{sBLK}, 160')
    a(f's_mul_i32 s47, s{sWAVE}, 20')
    a('s_add_u32 s46, s46, s47')
    a(f'v_add_u32 v3, s46, v0')
    a(f'v_lshrrev_b32 v{T+4}, 7, v3')
    a('v_and_b32 v3, 127, v3')
    a('v_lshlrev_b32 v3, 7, v3')
    a(f'v_mul_u32_u24 v{T+5}, {QPLANE}, v{T+4}')
    a(f'v_add_u32 v3, v3, v{T+5}')
    a(f'v_mov_b32 v{T+5}, {32*HEAD_BYTES - 5*QPLANE}')
    a(f'v_cmp_le_u32 vcc, 5, v{T+4}')
    a('s_nop 1')
    a(f'v_cndmask_b32 v{T+5}, 0, v{T+5}, vcc')
    a(f'v_add3_u32 v{VT}, v3, v{T+5}, s45')
    a(f'v_lshlrev_b32 v{T+4}, 3, v0')
    a(f's_lshl_b32 s46, s{sWAVE}, 9')
    a(f'v_add_u32 v{T+4}, s46, v{T+4}')
    a(f'v_mov_b32 v{T+6}, 0x3f80')
    a(f'v_mov_b32 v{T+7}, 0')
    a(f'v_mov_b32 v{T+8}, 0')
    a(f'v_mov_b32 v{T+9}, 0')
    a(f'v_add_u32 v{T+5}, {ONES}, v{T+4}')
    a(f'ds_write_b64 v{T+5}, {vr(T+6,2)}')
    a(f'ds_write_b64 v{T+5}, {vr(T+8,2)} offset:{ZERO-ONES}')
    def main_addresses():
        a('v_and_b32 v1, 31, v0')
        a('v_lshrrev_b32 v2, 5, v0')
        a('v_and_b32 v3, 19, v1')
        a(f'v_bfe_u32 v{T+4}, v1, 2, 1')
        a(f'v_lshl_or_b32 v3, v{T+4}, 3, v3')
        a(f'v_bfe_u32 v{T+4}, v1, 3, 1')
        a(f'v_lshl_or_b32 v3, v{T+4}, 2, v3')
        a('v_lshlrev_b32 v3, 3, v3')
        a(f'v_lshl_add_u32 v{VK}, v2, 13, v3')
        a(f'v_add_u32 v{VK2}, {4*4096}, v3')
        a(f'v_bfe_u32 v{T+4}, v0, 2, 2')
        a(f'v_lshl_add_u32 v{T+4}, v2, 3, v{T+4}')
        a(f'v_lshlrev_b32 v{T+4}, 3, v{T+4}')
        a(f'v_bfe_u32 v{T+5}, v0, 4, 1')
        a(f'v_and_b32 v{T+6}, 3, v0')
        a(f'v_lshl_add_u32 v{T+5}, v{T+5}, 2, v{T+6}')
        a(f'v_mul_u32_u24 v{T+6}, {VPL}, v{T+5}')
        a(f'v_add_u32 v{T+6}, {VOFF}, v{T+6}')
        a(f'v_mov_b32 v{T+7}, {ZERO}')
        a(f'v_mov_b32 v{T+8}, {ONES}')
        a(f'v_cmp_eq_u32 vcc, 5, v{T+5}')
        a('s_nop 1')
        a(f'v_cndmask_b32 v{T+7}, v{T+7}, v{T+8}, vcc')
        a(f'v_cmp_gt_u32 vcc, 5, v{T+5}')
        a('s_nop 1')
        a(f'v_cndmask_b32 v{VV}, v{T+7}, v{T+6}, vcc')
        a(f'v_cndmask_b32 v{VVM}, 0, 1, vcc')
        a(f'v_add_u32 v{VV}, v{VV}, v{T+4}')
    main_addresses()
    a(f's_mul_i32 s46, s{sWAVE}, 1280')
    a(f's_add_u32 s46, s46, {VB0}')
    a(f'v_lshlrev_b32 v{T+6}, 8, v{T+5}')
    a(f'v_add_u32 v{T+6}, s46, v{T+6}')
    a(f's_lshl_b32 s46, s{sWAVE}, 9')
    a(f'v_add_u32 v{T+8}, s46, v{T+7}')
    a(f'v_cndmask_b32 v{T+6}, v{T+8}, v{T+6}, vcc')
    a(f'v_add_u32 v{T+30}, v{T+6}, v{T+4}')
    a(f's_mul_i32 s46, s{sWAVE}, 2560')
    a(f's_add_u32 s46, s46, {PK0}')
    a('v_mul_u32_u24 v3, 80, v1')
    a(f'v_mul_u32_u24 v{T+6}, 40, v2')
    a(f'v_add3_u32 v{T+31}, v3, v{T+6}, s46')
    a(f'v_lshrrev_b32 v{T+4}, 3, v{T+4}')
    a(f'v_mul_u32_u24 v{T+4}, 80, v{T+4}')
    a(f'v_and_b32 v{T+6}, 1, v0')
    a(f'v_mul_u32_u24 v{T+6}, 40, v{T+6}')
    a(f'v_add_u32 v{T+4}, v{T+4}, v{T+6}')
    a(f'v_bfe_u32 v{T+6}, v0, 4, 1')
    a(f'v_bfe_u32 v{T+7}, v0, 1, 1')
    a(f'v_lshl_add_u32 v{T+6}, v{T+6}, 1, v{T+7}')
    a(f'v_lshl_add_u32 v{T+4}, v{T+6}, 3, v{T+4}')
    a(f'v_add_u32 v{T+32}, s46, v{T+4}')
    a(f'v_lshrrev_b32 v{T+2}, 4, v0')
    a(f'v_mul_u32_u24 v{T+2}, {QPLANE}, v{T+2}')
    a(f'v_and_b32 v{T+3}, 15, v0')
    a(f'v_lshl_add_u32 v{T+2}, v{T+3}, 4, v{T+2}')
    for r in (Q2+2, Q2+3, X2+2, X2+3, KA2+2, KA2+3, KA2+6, KA2+7):
        a(f'v_mov_b32 v{r}, 0')
    for j in range(16):
        a(f'v_mov_b32 v{O+j}, 0')
    a(f's_cmp_eq_u32 s{sWAVE}, 4')
    a('s_cbranch_scc0 L2_nopoll1')
    a(f's_add_u32 s46, s{sHEAD}, 32')
    a('s_mul_hi_u32 s46, s46, 357913942')
    a(f's_add_u32 s47, s{sHEAD}, 64')
    a('s_mul_hi_u32 s47, s47, 357913942')
    a(f's_mul_hi_u32 s48, s{sHEAD}, 357913942')
    a('s_lshl_b32 s46, s46, 4')
    a('s_lshl_b32 s47, s47, 4')
    a('s_lshl_b32 s48, s48, 4')
    a(f's_lshl_b32 s49, s{sBLK}, 1')
    a(f'v_and_b32 v{GA+2}, 15, v0')
    a(f'v_mov_b32 v{GA+3}, s46')
    a(f'v_mov_b32 v{GA+4}, s47')
    a('v_cmp_gt_u32 vcc, 16, v0')
    a('s_nop 1')
    a(f'v_cndmask_b32 v{GA+3}, v{GA+4}, v{GA+3}, vcc')
    a(f'v_add_u32 v{GA+2}, v{GA+2}, v{GA+3}')
    a(f'v_subrev_u32 v{GA+3}, 32, v0')
    a(f'v_lshrrev_b32 v{GA+4}, 1, v{GA+3}')
    a(f'v_and_b32 v{GA+3}, 1, v{GA+3}')
    a(f'v_add_u32 v{GA+3}, s49, v{GA+3}')
    a(f'v_mov_b32 v{GA+5}, s48')
    a('s_add_u32 s50, s48, 128')
    a(f'v_mov_b32 v{GA+6}, s50')
    a(f'v_cmp_eq_u32 vcc, 1, v{GA+4}')
    a('s_nop 1')
    a(f'v_cndmask_b32 v{GA+5}, v{GA+5}, v{GA+6}, vcc')
    a('s_add_u32 s50, s46, 128')
    a(f'v_mov_b32 v{GA+6}, s50')
    a(f'v_cmp_eq_u32 vcc, 2, v{GA+4}')
    a('s_nop 1')
    a(f'v_cndmask_b32 v{GA+5}, v{GA+5}, v{GA+6}, vcc')
    a('s_add_u32 s50, s47, 128')
    a(f'v_mov_b32 v{GA+6}, s50')
    a(f'v_cmp_eq_u32 vcc, 3, v{GA+4}')
    a('s_nop 1')
    a(f'v_cndmask_b32 v{GA+5}, v{GA+5}, v{GA+6}, vcc')
    a(f'v_add_u32 v{GA+3}, v{GA+3}, v{GA+5}')
    a('v_cmp_gt_u32 vcc, 32, v0')
    a('s_nop 1')
    a(f'v_cndmask_b32 v{GA+2}, v{GA+3}, v{GA+2}, vcc')
    a(f'v_lshlrev_b32 v{GA+2}, 7, v{GA+2}')
    poll('s1', GA+2, 40)
    a.label('L2_nopoll1')
    a('s_waitcnt lgkmcnt(0)')
    a('s_barrier')
    stamp('S1b')

    vm = VMQ(a)
    def load_rowfrag(dst1, dst2, gh_sgpr, tag):
        vm.issue(f'buffer_load_dwordx2 {vr(dst1,2)}, v{RA}, s[{SRD_QKV}:{SRD_QKV+3}], s{gh_sgpr} offen sc1', tag)
        a(f's_add_u32 s{sTMP}, s{gh_sgpr}, {QPLANE}')
        vm.issue(f'buffer_load_dwordx2 {vr(dst1+2,2)}, v{RA}, s[{SRD_QKV}:{SRD_QKV+3}], s{sTMP} offen sc1', tag)
        vm.issue(f'buffer_load_dwordx2 {vr(dst2,2)}, v{RA+1}, s[{SRD_QKV}:{SRD_QKV+3}], s{gh_sgpr} offen sc1', tag)
    a(f's_add_u32 s45, s{sHEAD}, {96+32}')
    a(f's_mul_i32 s45, s45, {HEAD_BYTES}')
    load_rowfrag(X1, X2, 45, 'kB')
    a(f's_add_u32 s46, s{sHEAD}, {96+64}')
    a(f's_mul_i32 s46, s46, {HEAD_BYTES}')
    a(f's_lshl_b32 s47, s{sT0}, 3')
    a('s_add_u32 s46, s46, s47')
    a(f's_mul_i32 s47, s{sWAVE}, 1280')
    a(f's_add_u32 s47, s47, {VB0}')
    a('s_mov_b32 m0, s47')
    a(f's_add_u32 s48, s46, {4*QPLANE-1024}')
    vm.issue(f'buffer_load_dwordx4 v{T+2}, s[{SRD_QKV}:{SRD_QKV+3}], s46 offen sc1 lds', 'vB')
    a('s_mov_b64 exec, 0xffff')
    vm.issue(f'buffer_load_dwordx4 v{T+2}, s[{SRD_QKV}:{SRD_QKV+3}], s48 offen offset:1024 sc1 lds', 'vB')
    a('s_mov_b64 exec, 0xfffff')
    vm.issue(f'buffer_load_dword v253, v{VT}, s[{SRD_QKV}:{SRD_QKV+3}], 0 offen sc1', 'touch')
    a('s_mov_b64 exec, -1')
    a(f's_mul_i32 s45, s{sHEAD}, {HEAD_BYTES}')
    load_rowfrag(Q1, Q2, 45, 'QA')
    def dma_chunk(tag):
        for i in range(5):
            a(f's_add_u32 m0, s{sL+i}, s{sSLOT}')
            a(f's_add_u32 s{sTMP}, s{sG+i}, s{sGC}')
            vm.issue(f'buffer_load_dwordx4 v{VL16}, s[{SRD_QKV}:{SRD_QKV+3}], s{sTMP} offen sc1 lds', tag)
    a(f's_mov_b32 s{sSLOT}, 0')
    a(f's_mov_b32 s{sGC}, 0')
    dma_chunk('c0')
    a(f's_mov_b32 s{sSLOT}, {SLOT}')
    a(f's_mov_b32 s{sGC}, 4096')
    dma_chunk('c1')

    def featmap(tag, x1, x2, pk, out):
        EN = T
        t0, t1, t2, t3 = T+10, T+11, T+12, T+13
        a(f'v_mfma_f32_32x32x16_bf16 {vr(pk,16)}, {vr(F1,4)}, {vr(x1,4)}, 0')
        a(f'v_mfma_f32_32x32x16_bf16 {vr(pk,16)}, {vr(F2,4)}, {vr(x2,4)}, {vr(pk,16)}')
        a(f's_mov_b32 s{sTMP}, 0x{f32bits(LOG2E):08x}')
        a('s_nop 15')
        Y = T+14
        for j in range(10):
            a(f'v_mul_f32 v{Y+j}, s{sTMP}, v{pk+j}')
        for j in range(10):
            a(f'v_exp_f32 v{pk+j}, v{Y+j}')
            a(f'v_exp_f32 v{EN+j}, -v{Y+j}')
        def sums():
            a(f'v_add_f32 v{t0}, v{pk}, v{pk+1}')
            a(f'v_add_f32 v{t1}, v{EN}, v{EN+1}')
            for j in range(2, 10):
                a(f'v_add_f32 v{t0}, v{t0}, v{pk+j}')
                a(f'v_add_f32 v{t1}, v{t1}, v{EN+j}')
            a('s_nop 1')
            a(f'v_permlane32_swap_b32 v{t0}, v{t1}')
            a('s_nop 1')
            a(f'v_add_f32 v{t0}, v{t0}, v{t1}')
            a(f'v_mov_b32 v{t1}, v{t0}')
            a('s_nop 1')
            a(f'v_permlane32_swap_b32 v{t0}, v{t1}')
            a('s_nop 1')
        sums()
        a(f'v_min_f32 v{t2}, v{t0}, v{t1}')
        a(f'v_max_f32 v{t3}, v{t0}, v{t1}')
        a(f'v_add_f32 v{t3}, v{t3}, v{t2}')
        a(f's_mov_b32 s{sTMP}, 0x1f800000')
        a(f's_mov_b32 s{sTMP+1}, 0x5f800000')
        a(f'v_cmp_nle_f32 vcc, s{sTMP}, v{t2}')
        a(f'v_cmp_nge_f32 s[{sTMP+2}:{sTMP+3}], s{sTMP+1}, v{t3}')
        a('s_nop 1')
        a(f's_or_b64 vcc, vcc, s[{sTMP+2}:{sTMP+3}]')
        if not force_slow:
            a(f's_cbranch_vccz L2_fm_ok_{tag}')
        a(f'v_max3_f32 v{t0}, v{Y}, v{Y+1}, v{Y+2}')
        a(f'v_min3_f32 v{t1}, v{Y}, v{Y+1}, v{Y+2}')
        for j in range(3, 9, 2):
            a(f'v_max3_f32 v{t0}, v{t0}, v{Y+j}, v{Y+j+1}')
            a(f'v_min3_f32 v{t1}, v{t1}, v{Y+j}, v{Y+j+1}')
        a(f'v_max_f32 v{t0}, v{t0}, v{Y+9}')
        a(f'v_min_f32 v{t1}, v{t1}, v{Y+9}')
        a(f'v_mov_b32 v{t2}, v{t0}')
        a(f'v_mov_b32 v{t3}, v{t1}')
        a(f'v_mov_b32 v{Y+10}, v{t0}')
        a(f'v_mov_b32 v{Y+11}, v{t1}')
        a('s_nop 1')
        a(f'v_permlane32_swap_b32 v{t2}, v{Y+10}')
        a(f'v_permlane32_swap_b32 v{t3}, v{Y+11}')
        a('s_nop 1')
        a(f'v_max_f32 v{t2}, v{t2}, v{Y+10}')
        a(f'v_min_f32 v{t3}, v{t3}, v{Y+11}')
        for j in range(10):
            a(f'v_sub_f32 v{pk+j}, v{Y+j}, v{t2}')
            a(f'v_sub_f32 v{EN+j}, v{t3}, v{Y+j}')
        for j in range(10):
            a(f'v_exp_f32 v{pk+j}, v{pk+j}')
            a(f'v_exp_f32 v{EN+j}, v{EN+j}')
        a('s_nop 0')
        sums()
        a.label(f'L2_fm_ok_{tag}')
        a(f'v_rcp_f32 v{t0}, v{t0}')
        a(f'v_rcp_f32 v{t1}, v{t1}')
        a('s_nop 0')
        for j in range(10):
            a(f'v_mul_f32 v{pk+j}, v{pk+j}, v{t0}')
            a(f'v_mul_f32 v{EN+j}, v{EN+j}, v{t1}')
        for j in range(5):
            a(f'v_cvt_pk_bf16_f32 v{out+j}, v{pk+2*j}, v{pk+2*j+1}')
            a(f'v_cvt_pk_bf16_f32 v{out+5+j}, v{EN+2*j}, v{EN+2*j+1}')

    def store_o(branch, eps, tag):
        t0, t1, t2, t3, t4 = T, T+1, T+2, T+3, T+4
        a(f'v_mov_b32 v{t0}, v{O+8}')
        a(f'v_mov_b32 v{t1}, v{O+8}')
        a('s_nop 1')
        a(f'v_permlane32_swap_b32 v{t0}, v{t1}')
        a('s_nop 1')
        if eps:
            a(f'v_add_f32 v{t1}, 0x{f32bits(eps):08x}, v{t1}')
        a(f'v_rcp_f32 v{t0}, v{t1}')
        a('s_nop 0')
        for j in range(12):
            a(f'v_mul_f32 v{O+j}, v{O+j}, v{t0}')
        for j in range(6):
            a(f'v_cvt_pk_bf16_f32 v{T+8+j}, v{O+2*j}, v{O+2*j+1}')
        a(f'v_lshrrev_b32 v{t2}, 5, v0')
        a(f'v_and_b32 v{t3}, 31, v0')
        a(f'v_add_u32 v{t3}, s{sT0}, v{t3}')
        a(f'v_lshrrev_b32 v{t4}, 4, v{t3}')
        a(f'v_mul_u32_u24 v{t4}, 20480, v{t4}')
        a(f'v_and_b32 v{t3}, 15, v{t3}')
        a(f'v_lshl_add_u32 v{t4}, v{t3}, 4, v{t4}')
        a(f's_mul_i32 s{sTMP}, s{sHEAD}, 5')
        a(f's_mov_b32 s{sTMP+1}, {branch*128*20*1024}')
        for aa in range(3):
            q = T+5
            a(f'v_add_u32 v{q}, s{sTMP}, v{t2}')
            if aa: a(f'v_add_u32 v{q}, {2*aa}, v{q}')
            a(f'v_lshrrev_b32 v{T+6}, 1, v{q}')
            a(f'v_lshl_add_u32 v{T+6}, v{T+6}, 8, v{t4}')
            a(f'v_and_b32 v{q}, 1, v{q}')
            a(f'v_lshl_add_u32 v{T+6}, v{q}, 3, v{T+6}')
            if aa == 2: a('s_mov_b32 exec_hi, 0')
            vm.issue(f'buffer_store_dwordx2 {vr(T+8+2*aa,2)}, v{T+6}, s[{SRD_O}:{SRD_O+3}], s{sTMP+1} offen sc1', tag)
            if aa == 2: a('s_mov_b64 exec, -1')

    stamp('P2iss')
    vm.wait('kB')
    stamp('kB')
    a('v_cmp_gt_u32 vcc, 32, v0')
    a('s_nop 1')
    a(f'v_cndmask_b32 v{X2}, 0, v{X2}, vcc')
    a(f'v_cndmask_b32 v{X2+1}, 0, v{X2+1}, vcc')
    a('s_nop 1')
    PH = P
    featmap('k', X1, X2, S, PH)
    for j in range(5):
        a(f'ds_write_b64 v{T+31}, {vr(PH+2*j,2)} offset:{8*j}')
    stamp('fmk')
    vm.wait('vB', ' lgkmcnt(0)')
    AF, BF = S, S+16
    for Tt in range(2):
        for t in range(2):
            for idx in range(2):
                a(f'ds_read_b64_tr_b16 {vr(AF+8*Tt+4*t+2*idx,2)}, v{T+32} offset:{32*Tt + (16*t+4*idx)*80}')
    for t in range(2):
        for idx in range(2):
            a(f'ds_read_b64_tr_b16 {vr(BF+4*t+2*idx,2)}, v{T+30} offset:{(16*t+4*idx)*8}')
    a('s_waitcnt lgkmcnt(0)')
    KV0, KV1 = VF, T
    a(f'v_mfma_f32_32x32x16_bf16 {vr(KV0,16)}, {vr(AF,4)}, {vr(BF,4)}, 0')
    a(f'v_mfma_f32_32x32x16_bf16 {vr(KV1,16)}, {vr(AF+8,4)}, {vr(BF,4)}, 0')
    a(f'v_mfma_f32_32x32x16_bf16 {vr(KV0,16)}, {vr(AF+4,4)}, {vr(BF+4,4)}, {vr(KV0,16)}')
    a(f'v_mfma_f32_32x32x16_bf16 {vr(KV1,16)}, {vr(AF+12,4)}, {vr(BF+4,4)}, {vr(KV1,16)}')
    a(f's_mul_i32 s46, s{sWAVE}, 5120')
    a(f's_add_u32 s46, s46, {PART0}')
    a(f'v_add_u32 v{T+29}, s46, v{VL16}')
    a('s_nop 15')
    for qd in range(4):
        a(f'ds_write_b128 v{T+29}, {vr(KV0+4*qd,4)} offset:{1024*qd}')
    a(f'ds_write_b128 v{T+29}, {vr(KV1,4)} offset:4096')
    a('s_waitcnt lgkmcnt(0)')
    a('s_barrier')
    stamp('Bp1')
    a(f's_cmp_ge_u32 s{sWAVE}, 5')
    a('s_cbranch_scc1 L2_noreduce')
    a(f's_lshl_b32 s46, s{sWAVE}, 10')
    a(f's_add_u32 s46, s46, {PART0}')
    a(f'v_add_u32 v{T+29}, s46, v{VL16}')
    for w in range(8):
        a(f'ds_read_b128 {vr(S+4*w,4)}, v{T+29} offset:{5120*w}')
    a('s_waitcnt lgkmcnt(0)')
    for w in range(1, 8):
        for j in range(4):
            a(f'v_add_f32 v{S+j}, v{S+j}, v{S+4*w+j}')
    a(f's_lshl_b32 s46, s{sHEAD}, 3')
    a(f's_add_u32 s46, s46, s{sBLK}')
    a('s_mul_i32 s46, s46, 5120')
    a(f's_lshl_b32 s47, s{sWAVE}, 10')
    a('s_add_u32 s46, s46, s47')
    a(f'buffer_store_dwordx4 {vr(S,4)}, v{VL16}, s[{SRD_KV}:{SRD_KV+3}], s46 offen sc1')
    a.label('L2_noreduce')
    a('v_cmp_gt_u32 vcc, 32, v0')
    a('s_waitcnt vmcnt(5) lgkmcnt(0)')
    a('s_nop 0')
    a(f'v_cndmask_b32 v{Q2}, 0, v{Q2}, vcc')
    a(f'v_cndmask_b32 v{Q2+1}, 0, v{Q2+1}, vcc')
    a('s_barrier')
    stamp('X0')
    a(f's_mov_b32 s{sSLOT}, {2*SLOT}')
    a(f's_mov_b32 s{sGC}, 8192')
    dma_chunk('c2')
    def kreads(tile, st, nxt):
        vk, vk2 = (VKN, VK2N) if nxt else (VK, VK2)
        off = tile*256
        return [f'ds_read_b64 {vr(KA1+4*st,2)}, v{vk} offset:{off}',
                f'ds_read_b64 {vr(KA1+4*st+2,2)}, v{vk} offset:{off+4096}',
                f'ds_read_b64 {vr(KA2+4*st,2)}, v{vk2} offset:{off}']
    def vreads(tile, st, nxt):
        vv = VVN if nxt else VV
        return [f'ds_read_b64_tr_b16 {vr(VF+8*st+4*t+2*idx,2)}, v{vv} offset:{(32*tile+16*t+4*idx)*8}' for t in range(2) for idx in range(2)]
    def qk1(st): return f'v_mfma_f32_32x32x16_bf16 {vr(S+16*st,16)}, {vr(KA1+4*st,4)}, {vr(Q1,4)}, 0'
    def qk2(st): return f'v_mfma_f32_32x32x16_bf16 {vr(S+16*st,16)}, {vr(KA2+4*st,4)}, {vr(Q2,4)}, {vr(S+16*st,16)}'
    def pv(t, st): return f'v_mfma_f32_32x32x16_bf16 {vr(O,16)}, {vr(VF+8*st+4*t,4)}, {vr(P+4*t,4)}, {vr(O,16)}'
    for r in kreads(0, 0, False): a(r)
    for j in range(4, 8): a(f'v_mov_b32 v{P+j}, 0')
    for j in range(8): a(f'v_mov_b32 v{VF+8+j}, 0')
    a('s_waitcnt lgkmcnt(0)')
    a(qk1(0)); a(qk2(0))
    for r in kreads(1, 1, False): a(r)
    for r in vreads(0, 0, False): a(r)
    a(f's_mov_b32 s{sC}, 0')
    a(f's_lshl_b32 s30, s{sHEAD}, 3')
    a(f's_add_u32 s30, s30, s{sBLK}')
    a('s_nop 7')
    a.raw('.p2align 6')
    a.label('L2_loop')
    for i in range(16):
        st = i % 2; sn = 1 - st
        s = S + 16*st
        e = lambda j: f'v_exp_f32 v{s+j}, v{s+j}'
        c = lambda j: f'v_cvt_pk_bf16_f32 v{P+j}, v{s+2*j}, v{s+2*j+1}'
        if i == 14:
            a(f's_cmp_eq_u32 s{sC}, 3')
            a('s_cbranch_scc1 L2_nobar')
            a(f's_cmp_eq_u32 s{sC}, 0')
            a('s_cbranch_scc1 L2_w5')
            a('s_waitcnt vmcnt(0)')
            a('s_branch L2_bar')
            a.label('L2_w5')
            a('s_waitcnt vmcnt(5)')
            a.label('L2_bar')
            a('s_barrier')
            a(f's_cmp_eq_u32 s{sC}, 0')
            a('s_cbranch_scc0 L2_noatom')
            a(f's_cmp_eq_u32 s{sWAVE}, 4')
            a('s_cbranch_scc0 L2_noatom')
            set_flag(WS_F2, 30, T)
            a.label('L2_noatom')
            a(f's_cmp_eq_u32 s{sC}, 1')
            a('s_cbranch_scc0 L2_nodma')
            a(f's_mov_b32 s{sSLOT}, 0')
            a(f's_mov_b32 s{sGC}, {3*4096}')
            dma_chunk('c3')
            a.label('L2_nodma')
            a.label('L2_nobar')
            a(f's_mov_b32 s{sD}, {SLOT}')
            a(f's_cmp_eq_u32 s{sC}, 2')
            a(f's_cselect_b32 s{sD}, {(-2*SLOT) & 0xffffffff}, s{sD}')
            a(f'v_add_u32 v{VKN}, s{sD}, v{VK}')
            a(f'v_add_u32 v{VK2N}, s{sD}, v{VK2}')
            a(f'v_mul_lo_u32 v{VVN}, v{VVM}, s{sD}')
            a(f'v_add_u32 v{VVN}, v{VVN}, v{VV}')
        kr = kreads((i+2) % 16, st, i+2 >= 16)
        vrd = vreads((i+1) % 16, sn, i+1 >= 16)
        a('s_waitcnt lgkmcnt(0)')
        a(qk1(sn))
        for r in kr: a(r)
        a(e(0)); a(e(1)); a(e(2)); a(e(3)); a(c(0))
        a(pv(1, sn))
        a(e(4)); a(c(1)); a(e(5)); a(e(6)); a(e(7)); a(c(2))
        a(qk2(sn))
        for r in vrd: a(r)
        a(e(8)); a(c(3)); a(e(9)); a(e(10)); a(e(11)); a(c(4))
        a(pv(0, st))
        a(e(12)); a(c(5)); a(e(13)); a(e(14)); a(e(15)); a(c(6)); a(c(7))
    a(f'v_mov_b32 v{VK}, v{VKN}')
    a(f'v_mov_b32 v{VK2}, v{VK2N}')
    a(f'v_mov_b32 v{VV}, v{VVN}')
    a(f's_add_u32 s{sC}, s{sC}, 1')
    a(f's_cmp_lt_u32 s{sC}, 4')
    a('s_cbranch_scc1 L2_loop')
    stamp('P2loop')
    vm.q = []
    a(f's_add_u32 s45, s{sHEAD}, 96')
    a(f's_mul_i32 s45, s45, {HEAD_BYTES}')
    load_rowfrag(X1, X2, 45, 'qB')
    a('s_waitcnt lgkmcnt(0)')
    a(pv(1, 1))
    a('s_nop 15')
    t0, t1, t2 = T+2, T+3, T+4
    a(f'v_mov_b32 v{t0}, v{O+8}')
    a(f'v_mov_b32 v{t1}, v{O+8}')
    a(f'v_mov_b32 v{t2}, 0')
    a(f'v_permlane32_swap_b32 v{t0}, v{t1}')
    for j in range(12):
        a(f'v_fma_f32 v{t2}, v{O+j}, 0, v{t2}')
    a(f's_mov_b32 s{sTMP}, 0x1f800000')
    a(f's_mov_b32 s{sTMP+1}, 0x5f800000')
    a(f'v_cmp_nle_f32 vcc, s{sTMP}, v{t1}')
    a(f'v_cmp_nge_f32 s[{sTMP+2}:{sTMP+3}], s{sTMP+1}, v{t1}')
    a(f'v_cmp_u_f32 s[{sTMP+4}:{sTMP+5}], v{t2}, v{t2}')
    a('s_nop 1')
    a(f's_or_b64 vcc, vcc, s[{sTMP+2}:{sTMP+3}]')
    a(f's_or_b64 vcc, vcc, s[{sTMP+4}:{sTMP+5}]')
    a(f's_cmp_lg_u64 vcc, 0')
    a(f's_cselect_b32 s{sTMP}, 1, {1 if force_slow else 0}')
    a(f'v_mov_b32 v{t0}, s{sTMP}')
    a(f's_lshl_b32 s{sTMP+1}, s{sWAVE}, 2')
    a(f's_add_u32 s{sTMP+1}, s{sTMP+1}, {FLAG0}')
    a(f'v_mov_b32 v{t1}, s{sTMP+1}')
    a(f'ds_write_b32 v{t1}, v{t0}')
    P3BR, P3RB, P3CB = 56, 57, 58
    a('s_and_b32 s44, s2, 7')
    a('s_lshr_b32 s45, s2, 3')
    a(f's_lshr_b32 s{P3BR}, s44, 2')
    a(f's_and_b32 s{P3RB}, s44, 3')
    a(f's_lshl_b32 s{P3RB}, s{P3RB}, 2')
    a('s_lshr_b32 s46, s45, 3')
    a(f's_add_u32 s{P3RB}, s{P3RB}, s46')
    a(f's_and_b32 s{P3CB}, s45, 7')
    a(f's_cmp_eq_u32 s{sWAVE}, 4')
    a('s_cbranch_scc0 L2_nopoll')
    a(f's_lshl_b32 s46, s{sHEAD}, 3')
    a(f'v_add_u32 v{T+5}, s46, v0')
    a(f'v_lshlrev_b32 v{T+5}, 7, v{T+5}')
    a(f'v_add_u32 v{T+5}, {WS_F2-WS_FLG}, v{T+5}')
    a(f's_lshl_b32 s46, s{P3BR}, 3')
    a(f's_add_u32 s46, s46, s{P3CB}')
    a('s_mul_i32 s46, s46, 25')
    a(f'v_subrev_u32 v{T+6}, 8, v0')
    a(f'v_add_u32 v{T+6}, s46, v{T+6}')
    a(f'v_and_b32 v{T+6}, 255, v{T+6}')
    a(f'v_lshlrev_b32 v{T+6}, 7, v{T+6}')
    a('v_cmp_gt_u32 vcc, 8, v0')
    a('s_nop 1')
    a(f'v_cndmask_b32 v{T+5}, v{T+6}, v{T+5}, vcc')
    poll('kv', T+5, 33)
    a.label('L2_nopoll')
    a('s_waitcnt lgkmcnt(0)')
    a('s_barrier')
    stamp('E1')
    a(f'v_mov_b32 v{t1}, {FLAG0}')
    a(f'ds_read_b128 {vr(S,4)}, v{t1}')
    a(f'ds_read_b128 {vr(S+4,4)}, v{t1} offset:16')
    a(f's_mul_i32 s46, s{sHEAD}, {8*5120}')
    a(f's_lshl_b32 s47, s{sWAVE}, 10')
    a('s_add_u32 s46, s46, s47')
    a(f's_cmp_ge_u32 s{sWAVE}, 5')
    a(f's_cselect_b32 s46, {WS_KV_BYTES}, s46')
    for b in range(8):
        vm.issue(f'buffer_load_dwordx4 {vr(GA+4*b,4)}, v{VL16}, s[{SRD_KV}:{SRD_KV+3}], s46 offen sc1', 'gather')
        a('s_add_u32 s46, s46, 5120')
    a('s_waitcnt lgkmcnt(0)')
    for j in range(1, 8):
        a(f'v_or_b32 v{S}, v{S}, v{S+j}')
    a('s_nop 0')
    a(f'v_readfirstlane_b32 s{sTMP}, v{S}')
    a(f's_cmp_lg_u32 s{sTMP}, 0')
    a('s_cbranch_scc1 L2_slow')
    a.label('L2_adone')
    store_o(0, None, 'oA')
    a(f's_lshl_b32 s44, s{P3BR}, 3')
    a(f's_add_u32 s44, s44, s{P3CB}')
    a('s_mul_i32 s44, s44, 102400')
    a(f's_lshl_b32 s45, s{sWAVE}, 10')
    a('s_add_u32 s44, s44, s45')
    for i in range(13):
        if i == 12:
            a(f's_cmp_ge_u32 s{sWAVE}, 4')
            a(f's_cselect_b32 s44, {WS_WO_BYTES}, s44')
            a(f's_cselect_b32 s45, {122880-12*8192}, s45')
        a(f's_add_u32 m0, s45, {8192*i}')
        a(f's_add_u32 s46, s44, {8192*i}')
        vm.issue(f'buffer_load_dwordx4 v{VL16}, s[{SRD_WO}:{SRD_WO+3}], s46 offen sc1 lds', 'wo')
    stamp('woiss')
    vm.wait('gather')
    stamp('gath')
    for b in range(1, 8):
        for j in range(4):
            a(f'v_add_f32 v{GA+j}, v{GA+j}, v{GA+4*b+j}')
    a(f'v_cvt_pk_bf16_f32 v{T+20}, v{GA}, v{GA+1}')
    a(f'v_cvt_pk_bf16_f32 v{T+21}, v{GA+2}, v{GA+3}')
    a('v_mul_u32_u24 v3, 48, v0')
    a(f's_lshl_b32 s46, s{sWAVE}, 3')
    a(f's_add_u32 s46, s46, {KVT0}')
    a('v_add_u32 v3, s46, v3')
    a(f's_cmp_ge_u32 s{sWAVE}, 6')
    a('s_cbranch_scc1 L2_nosum')
    a(f'ds_write_b64 v3, {vr(T+20,2)}')
    a.label('L2_nosum')
    a('v_cmp_gt_u32 vcc, 32, v0')
    a('s_nop 1')
    a(f'v_cndmask_b32 v{X2}, 0, v{X2}, vcc')
    a(f'v_cndmask_b32 v{X2+1}, 0, v{X2+1}, vcc')
    a('s_nop 1')
    featmap('q', X1, X2, S, PH)
    a(f'v_mov_b32 v{PH+10}, 0')
    a(f'v_mov_b32 v{PH+11}, 0')
    a('s_waitcnt lgkmcnt(0)')
    a('s_barrier')
    stamp('E2')
    a('v_mul_u32_u24 v3, 48, v0')
    a(f'v_add_u32 v3, {KVT0}, v3')
    for u in range(3):
        a(f'ds_read_b128 {vr(S+4*u,4)}, v3 offset:{16*u}')
    a('s_waitcnt lgkmcnt(0)')
    a(f'v_mfma_f32_32x32x16_bf16 {vr(O,16)}, {vr(S,4)}, {vr(PH,4)}, 0')
    a(f'v_mfma_f32_32x32x16_bf16 {vr(O,16)}, {vr(S+4,4)}, {vr(PH+4,4)}, {vr(O,16)}')
    a(f'v_mfma_f32_32x32x16_bf16 {vr(O,16)}, {vr(S+8,4)}, {vr(PH+8,4)}, {vr(O,16)}')
    a('s_nop 15')
    store_o(1, 1e-6, 'oB')
    stamp('oBiss')
    vm.wait_all()
    a('s_barrier')
    stamp('S2a')

    a(f's_cmp_eq_u32 s{sWAVE}, 4')
    a('s_cbranch_scc0 L3_nosync')
    set_flag(WS_F3, 30, T)
    a(f's_lshr_b32 s46, s{P3RB}, 1')
    a(f'v_lshl_add_u32 v{T+5}, v0, 3, s46')
    a(f'v_lshlrev_b32 v{T+5}, 7, v{T+5}')
    a(f'v_add_u32 v{T+5}, {WS_F3-WS_FLG}, v{T+5}')
    poll('s2', T+5, 32)
    a.label('L3_nosync')
    OF, ACC3, WF3 = 8, 168, 208
    a('v_lshlrev_b32 v1, 4, v0')
    a('v_add_u32 v3, 61440, v1')
    a(f's_lshl_b32 s23, s{P3BR}, 7')
    a(f's_lshl_b32 s24, s{P3RB}, 3')
    a('s_add_u32 s23, s23, s24')
    a('s_mul_i32 s23, s23, 20480')
    make_srd(a, 12, pOUT, pOUT+1, 2048*1280*2)
    a('s_barrier')
    stamp('S2b')
    a(f's_cmp_ge_u32 s{sWAVE}, 4')
    a('s_cbranch_scc0 L3_compute')
    a(f's_mul_i32 s24, s{P3CB}, 160')
    a(f's_sub_u32 s25, s{sWAVE}, 4')
    a('s_mul_i32 s25, s25, 40')
    a('s_add_u32 s24, s24, s25')
    a('v_add_u32 v2, s24, v0')
    a('v_lshlrev_b32 v2, 7, v2')
    a('s_mov_b32 exec_hi, 0xff')
    a(f'buffer_load_dword v3, v2, s[{SRD_O}:{SRD_O+3}], s23 offen sc1')
    a('s_mov_b64 exec, -1')
    a('s_branch L_fin')
    a.label('L3_compute')
    a(f's_lshl_b32 s24, s{sWAVE}, 1')
    a('s_mul_i32 s24, s24, 20480')
    a('s_add_u32 s23, s23, s24')
    vm = VMQ(a)
    for ks in range(20):
        for tm in range(2):
            a(f's_add_u32 s29, s23, {tm*20480 + ks*1024}')
            vm.issue(f'buffer_load_dwordx4 {vr(OF+8*ks+4*tm,4)}, v1, s[{SRD_O}:{SRD_O+3}], s29 offen sc1', f'o{ks}')
    def wreads(ks, st):
        out = []
        for ct in range(5):
            off = (ks*5+ct)*1024
            out.append(f'ds_read_b128 {vr(WF3+20*st+4*ct,4)}, v1 offset:{off}' if off < 61440 else f'ds_read_b128 {vr(WF3+20*st+4*ct,4)}, v3 offset:{off-61440}')
        return out
    for r in wreads(0, 0): a(r)
    for ks in range(20):
        st = ks % 2
        nxt = wreads(ks+1, 1-st) if ks+1 < 20 else []
        vm.wait(f'o{ks}', ' lgkmcnt(0)')
        m = 0
        for ct in range(5):
            for tm in range(2):
                acc = ACC3 + 20*tm + 4*ct
                c = '0' if ks == 0 else vr(acc,4)
                a(f'v_mfma_f32_16x16x32_bf16 {vr(acc,4)}, {vr(WF3+20*st+4*ct,4)}, {vr(OF+8*ks+4*tm,4)}, {c}')
                if m < len(nxt): a(nxt[m])
                m += 1
    stamp('P3loop')
    a('v_and_b32 v2, 15, v0')
    a('v_lshrrev_b32 v3, 4, v0')
    a('v_mul_u32_u24 v2, 160, v2')
    a('v_lshl_add_u32 v2, v3, 3, v2')
    a(f's_mul_i32 s28, s{sWAVE}, 5120')
    a(f's_add_u32 s28, s28, {STG0}')
    a('v_add_u32 v2, s28, v2')
    a('s_nop 7')
    for tm in range(2):
        for ct in range(5):
            acc = ACC3 + 20*tm + 4*ct
            d = 16 + 2*(tm*5+ct)
            a(f'v_cvt_pk_bf16_f32 v{d}, v{acc}, v{acc+1}')
            a(f'v_cvt_pk_bf16_f32 v{d+1}, v{acc+2}, v{acc+3}')
            a(f'ds_write_b64 v2, {vr(d,2)} offset:{tm*2560 + ct*32}')
    a('s_mov_b32 s29, 0x1999999a')
    a(f's_lshl_b32 s30, s{P3RB}, 7')
    a(f's_lshl_b32 s31, s{sWAVE}, 5')
    a('s_add_u32 s30, s30, s31')
    a('s_mul_i32 s30, s30, 2560')
    a(f's_mul_i32 s31, s{P3BR}, 1280')
    a('s_add_u32 s30, s30, s31')
    a(f's_mul_i32 s31, s{P3CB}, 160')
    a('s_add_u32 s30, s30, s31')
    for i in range(5):
        a(f'v_add_u32 v4, {64*i}, v0')
        a('v_mul_hi_u32 v5, v4, s29')
        a('v_mul_u32_u24 v6, 10, v5')
        a('v_sub_u32 v6, v4, v6')
        a('v_mul_u32_u24 v5, 2560, v5')
        a(f'v_lshl_add_u32 v{40+i}, v6, 4, v5')
        a(f'v_lshlrev_b32 v4, 4, v4')
        a(f'v_add_u32 v{48+i}, s28, v4')
    a('s_waitcnt lgkmcnt(0)')
    for i in range(5):
        a(f'ds_read_b128 {vr(56+4*i,4)}, v{48+i}')
    for i in range(5):
        a(f's_waitcnt lgkmcnt({4-i})')
        a(f'buffer_store_dwordx4 {vr(56+4*i,4)}, v{40+i}, s[12:15], s30 offen')
    a.label('L_fin')
    if diag:
        a('s_waitcnt vmcnt(0)')
        stamp('end')
        a('s_memrealtime s[92:93]')
        a('s_waitcnt lgkmcnt(0)')
        a('s_sub_u32 s92, s92, s90')
        a(f'v_writelane_b32 v255, s92, 30')
        a(f'v_writelane_b32 v255, s90, 31')
        make_srd(a, 16, pWS, pWS+1, 0x100000, add=WS_DIAG)
        a('s_lshl_b32 s44, s2, 3')
        a(f's_add_u32 s44, s44, s{sWAVE}')
        a('s_lshl_b32 s44, s44, 7')
        a('v_lshlrev_b32 v1, 2, v0')
        a('s_mov_b32 exec_hi, 0')
        a('buffer_store_dword v255, v1, s[16:19], s44 offen')
        a('s_waitcnt vmcnt(0)')
        kernel.stamps = stamps
    a('s_endpgm')

    a.label('L2_slow')
    M, AL, MT, MT2 = T+14, T+15, T+16, T+17
    a('s_waitcnt vmcnt(0) lgkmcnt(0)')
    for j in range(16):
        a(f'v_mov_b32 v{O+j}, 0')
    a(f'v_mov_b32 v{M}, 0xff7fffff')
    main_addresses()
    for r in (KA2+2, KA2+3):
        a(f'v_mov_b32 v{r}, 0')
    a(f's_mov_b32 s{sC}, 0')
    a.label('L2_slow_chunk')
    a('s_barrier')
    a(f's_mov_b32 s{sSLOT}, 0')
    a(f's_lshl_b32 s{sGC}, s{sC}, 12')
    vmsave = vm; vm = VMQ(a)
    for i in range(5):
        a(f's_add_u32 m0, s{sL+i}, s{sSLOT}')
        a(f's_add_u32 s{sTMP}, s{sG+i}, s{sGC}')
        a(f'buffer_load_dwordx4 v{VL16}, s[{SRD_QKV}:{SRD_QKV+3}], s{sTMP} offen sc1 lds')
    a('s_waitcnt vmcnt(0)')
    a('s_barrier')
    a(f's_mov_b32 s{sD}, 0')
    a(f'v_mov_b32 v{VKN}, v{VK}')
    a(f'v_mov_b32 v{VK2N}, v{VK2}')
    a(f'v_mov_b32 v{VVN}, v{VV}')
    a.label('L2_slow_tile')
    for r in kreads(0, 0, True): a(r)
    for r in vreads(0, 0, True): a(r)
    a('s_waitcnt lgkmcnt(0)')
    a(qk1(0)); a(qk2(0))
    a('s_nop 15')
    a(f'v_max3_f32 v{MT}, v{S}, v{S+1}, v{S+2}')
    for j in range(3, 15, 2):
        a(f'v_max3_f32 v{MT}, v{MT}, v{S+j}, v{S+j+1}')
    a(f'v_max_f32 v{MT}, v{MT}, v{S+15}')
    a(f'v_mov_b32 v{MT2}, v{MT}')
    a('s_nop 1')
    a(f'v_permlane32_swap_b32 v{MT}, v{MT2}')
    a('s_nop 1')
    a(f'v_max3_f32 v{MT}, v{MT}, v{MT2}, v{M}')
    a(f'v_sub_f32 v{AL}, v{M}, v{MT}')
    a(f'v_exp_f32 v{AL}, v{AL}')
    a(f'v_mov_b32 v{M}, v{MT}')
    for j in range(16):
        a(f'v_sub_f32 v{S+j}, v{S+j}, v{MT}')
    for j in range(16):
        a(f'v_exp_f32 v{S+j}, v{S+j}')
    for j in range(16):
        a(f'v_mul_f32 v{O+j}, v{O+j}, v{AL}')
    for j in range(8):
        a(f'v_cvt_pk_bf16_f32 v{P+j}, v{S+2*j}, v{S+2*j+1}')
    a('s_nop 1')
    a(pv(0, 0)); a(pv(1, 0))
    a('s_nop 15')
    a(f'v_add_u32 v{VKN}, 256, v{VKN}')
    a(f'v_add_u32 v{VK2N}, 256, v{VK2N}')
    a(f'v_add_u32 v{VVN}, 256, v{VVN}')
    a(f's_add_u32 s{sD}, s{sD}, 1')
    a(f's_cmp_lt_u32 s{sD}, 16')
    a('s_cbranch_scc1 L2_slow_tile')
    a(f's_add_u32 s{sC}, s{sC}, 1')
    a(f's_cmp_lt_u32 s{sC}, 4')
    a('s_cbranch_scc1 L2_slow_chunk')
    a('s_barrier')
    a('s_branch L2_adone')
    a.label('L_end')
    a('s_endpgm')
    return a.text()

def build(diag=False, force_slow=False, dst='fused.s'):
    header = open('concat_heads__softmax_full_mha__linear_kernel_hedgehog__prompt.s.ref').read().split('; Override launch')[0]
    out = header + f'; @launch grid=(256,1,1) block=(512,1,1) lds={LDS}\n'
    out += '.amdgcn_target "amdgcn-amd-amdhsa--gfx950"\n.text\n' + kernel(diag, force_slow)
    out += '.section .rodata,"a"\n.p2align 6\n' + kernel_desc(NAME, 256)
    open(dst, 'w').write(out)
    return dst

if __name__ == '__main__':
    import sys
    build(False, False, 'fused.s')
    build(True, False, 'fused_diag.s')
    build(False, True, 'fused_slow.s')
    print(kernel.stamps)
```

```python
class Asm:
    def __init__(self):
        self.lines = []
    def __call__(self, s=''):
        for l in s.split('\n'):
            self.lines.append('    ' + l.strip() if l.strip() else '')
    def label(self, name):
        self.lines.append(name + ':')
    def comment(self, s):
        self.lines.append('    ; ' + s)
    def raw(self, s):
        self.lines.append(s)
    def text(self):
        return '\n'.join(self.lines) + '\n'

def vr(base, n=1):
    return f'v{base}' if n == 1 else f'v[{base}:{base+n-1}]'
def sr(base, n=1):
    return f's{base}' if n == 1 else f's[{base}:{base+n-1}]'

KA_AX, KA_AW, KA_AWO, KA_BX, KA_BW, KA_PHI, KA_BWO, KA_OUT, KA_DBG, KA_WS = [8*i for i in range(10)]

HEAD_BYTES = 3*2048*16
QPLANE = 2048*16
WS_QKV = 0
WS_QKV_BYTES = 192*HEAD_BYTES
WS_O = 0x1400000
WS_O_BYTES = 2*128*20*1024
WS_WO = 0x1A00000
WS_WO_BYTES = 2*8*20*5*1024
WS_PHI = 0x1C00000
WS_PHI_BYTES = 32*2*1024
WS_KV = 0x1D00000
WS_KV_BYTES = 32*8*5120

SRD3 = '0x00020000'

def make_srd(a, dst, base_lo, base_hi, nbytes, add=0):
    if add:
        a(f's_add_u32 s{dst}, s{base_lo}, {add}')
        a(f's_addc_u32 s{dst+1}, s{base_hi}, 0')
    else:
        a(f's_mov_b32 s{dst}, s{base_lo}')
        a(f's_mov_b32 s{dst+1}, s{base_hi}')
    a(f's_mov_b32 s{dst+2}, {nbytes}')
    a(f's_mov_b32 s{dst+3}, {SRD3}')

def kernel_head(a, name):
    a.raw(f'.globl {name}')
    a.raw('.p2align 8')
    a.raw(f'.type {name},@function')
    a.raw(f'{name}:')

def kernel_desc(name, vgpr, sgpr=102, accum=None):
    accum = accum or min(256, (vgpr+3)//4*4)
    return f'''.amdhsa_kernel {name}
  .amdhsa_next_free_vgpr {vgpr}
  .amdhsa_next_free_sgpr {sgpr}
  .amdhsa_accum_offset {accum}
  .amdhsa_group_segment_fixed_size 0
  .amdhsa_kernarg_size 80
  .amdhsa_user_sgpr_count 2
  .amdhsa_user_sgpr_kernarg_segment_ptr 1
  .amdhsa_system_sgpr_workgroup_id_x 1
.end_amdhsa_kernel
'''

WS_F1 = 0x2000000
WS_F2 = 0x2010000
WS_F3 = 0x2020000
WS_F4 = 0x2030000
WS_FLG = WS_F1
WS_FLG_BYTES = 0x40000
WS_DIAG = 0x3000000

class VMQ:
    def __init__(self, a):
        self.a = a; self.q = []
    def issue(self, text, tag):
        self.a(text); self.q.append(tag)
    def count_after(self, tags):
        if isinstance(tags, str): tags = (tags,)
        last = max((i for i, t in enumerate(self.q) if t in tags), default=-1)
        return len(self.q) - 1 - last
    def wait(self, tags, extra=''):
        n = self.count_after(tags)
        assert n <= 63, n
        self.a(f's_waitcnt vmcnt({n}){extra}')
    def wait_all(self, extra=''):
        self.a(f's_waitcnt vmcnt(0){extra}'); self.q = []
```

```python
from common import *
import struct
def f32bits(x): return struct.unpack('<I', struct.pack('<f', x))[0]

NAME = 'concat_heads__softmax_full_mha__linear_kernel_hedgehog__prompt_kernel'
LDS = 163840
CA = 0.22360679774997896 * 1.4426950408889634
LOG2E = 1.4426950408889634

sWAVE = 3
pAX, pAW, pAWO, pBX, pBW, pPHI, pBWO, pOUT, pDBG, pWS = 64, 66, 68, 70, 72, 74, 76, 78, 80, 82
sNONCE, sHEAD, sBLK = 84, 85, 86
sSTAMP = 88
SRD_QKV = 16
SRD_FLG = 96
sSLOT, sGC = 94, 95
XS_STRIDE, W_BASE, WS_STRIDE, NSTAGE = 16384, 49152, 32768, 10
F1, F2 = 240, 244
SLOT, VOFF, VPL = 24832, 12288, 4160
NCH = 8
BS0 = 4*SLOT
KVT0 = BS0 + 8*4096
FLAG0 = KVT0 + 3072
MRG0 = 102400
STG0 = 102400
Q1, Q2, O, S, P = 4, 12, 20, 52, 84
KA1, KA2, VF = 92, 100, 108
VK, VK2, VV, VKN, VK2N, VVN, VL16, VT = 124, 125, 126, 127, 128, 129, 130, 131
X1, X2, PH = 132, 136, 140
T = 152
PKR, AF, BF, GA = 192, 208, 224, 192
VBT, PKW, PKT, RA, RQ = 232, 233, 234, 236, 238
SRD_O, SRD_KV, SRD_WO = 8, 12, 24
sT0 = 31
sG, sL, sC, sD, sTMP = 32, 35, 42, 43, 44
sPAR, sGRP = 38, 39
P3BR, P3RB, P3CB = 56, 57, 58
sFI = 30

def kernel(diag=False, force_slow=False, opt=None):
    opt = opt or {}
    a = Asm()
    stamps = []
    def stamp(tag):
        if not diag: return
        i = len(stamps); stamps.append(tag)
        a(f'{"s_memrealtime" if opt.get("rt") else "s_memtime"} s[{sSTAMP}:{sSTAMP+1}]')
        a('s_waitcnt lgkmcnt(0)')
        a(f'v_writelane_b32 v255, s{sSTAMP}, {i}')

    kernel_head(a, NAME)
    a('s_cmp_ge_u32 s2, 256')
    a('s_cbranch_scc1 L_end')
    a(f's_load_dwordx16 s[{pAX}:{pAX+15}], s[0:1], 0')
    a(f's_load_dwordx4 s[{pDBG}:{pDBG+3}], s[0:1], 64')
    a('v_lshrrev_b32 v1, 6, v0')
    a('v_and_b32 v0, 63, v0')
    a('s_and_b32 s25, s2, 7')
    a(f'v_readfirstlane_b32 s{sWAVE}, v1')
    a('s_lshr_b32 s26, s2, 3')
    if diag:
        a('v_mov_b32 v255, 0')
        a('s_memrealtime s[90:91]')
    a('s_getpc_b64 s[40:41]')
    a.label('L_pc')
    a('s_mul_i32 s42, s26, 12')
    a('v_add_u32 v2, s42, v0')
    a('v_lshlrev_b32 v3, 7, v2')
    a('v_cmp_gt_u32 vcc, 12, v0')
    a('s_mov_b32 s43, L_end-L_pc')
    a('v_cmp_gt_u32 s[44:45], s43, v3')
    a('s_nop 1')
    a('s_and_b64 vcc, vcc, s[44:45]')
    a(f's_cmp_eq_u32 s{sWAVE}, 3')
    a('s_cselect_b64 vcc, vcc, 0')
    a('s_and_saveexec_b64 s[44:45], vcc')
    a('s_cbranch_execz L_nocode')
    a('global_load_dword v254, v3, s[40:41]')
    a.label('L_nocode')
    a('s_mov_b64 exec, s[44:45]')
    stamp('start')
    a('s_lshr_b32 s20, s25, 2')
    a('s_and_b32 s21, s25, 1')
    a('s_lshl_b32 s21, s21, 3')
    a('s_and_b32 s27, s26, 7')
    a('s_add_u32 s21, s21, s27')
    a('s_lshr_b32 s22, s25, 1')
    a('s_and_b32 s22, s22, 1')
    a('s_lshl_b32 s22, s22, 2')
    a('s_lshr_b32 s27, s26, 3')
    a('s_add_u32 s22, s22, s27')
    a('s_lshl_b32 s23, s21, 7')
    a('s_mul_i32 s24, s22, 480')
    a(f's_lshl_b32 s{sHEAD}, s25, 2')
    a('s_lshr_b32 s27, s26, 3')
    a(f's_add_u32 s{sHEAD}, s{sHEAD}, s27')
    a(f's_and_b32 s{sBLK}, s26, 7')
    a(f's_cmp_ge_u32 s{sWAVE}, 4')
    a('s_cbranch_scc1 L1_loader')

    def phi_addr():
        a('v_and_b32 v1, 31, v0')
        a('v_lshrrev_b32 v2, 5, v0')
        a('v_subrev_u32 v3, 2, v1')
        a('v_cmp_gt_u32 vcc, 18, v1')
        a('v_and_b32 v4, 30, v1')
        a('s_nop 0')
        a('v_cndmask_b32 v3, v3, v1, vcc')
        a('v_cmp_gt_u32 s[38:39], 18, v1')
        a('v_cmp_eq_u32 vcc, 20, v4')
        a('v_lshlrev_b32 v3, 1, v3')
        a('s_nop 0')
        a('s_or_b64 s[38:39], s[38:39], vcc')
        a('v_mul_u32_u24 v4, 320, v2')
        a('v_add_u32 v4, v4, v3')
        a('v_mov_b32 v6, 0x40000000')
        a('v_cndmask_b32 v4, v6, v4, s[38:39]')
        a('v_cmp_eq_u32 vcc, 0, v2')
        a('v_add_u32 v5, 640, v3')
        a('s_nop 0')
        a('s_and_b64 s[38:39], s[38:39], vcc')
        a('v_cndmask_b32 v5, v6, v5, s[38:39]')
    PG = 200
    def phi_loads(vm):
        make_srd(a, 52, pPHI, pPHI+1, 32*800)
        a(f's_mul_i32 s56, s{sHEAD}, 800')
        for j in range(8):
            vm.issue(f'buffer_load_ushort v{PG+j}, v4, s[52:55], s56 offen offset:{j*40}', 'phi')
        for j in range(4):
            vm.issue(f'buffer_load_ushort v{PG+8+j}, v5, s[52:55], s56 offen offset:{j*40}', 'phi')
    def phi_pack():
        for jj in range(4):
            a(f'v_lshl_or_b32 v{F1+jj}, v{PG+1+2*jj}, 16, v{PG+2*jj}')
        for jj in range(2):
            a(f'v_lshl_or_b32 v{F2+jj}, v{PG+9+2*jj}, 16, v{PG+8+2*jj}')
        a(f'v_mov_b32 v{F2+2}, 0')
        a(f'v_mov_b32 v{F2+3}, 0')
    def common_srds():
        make_srd(a, SRD_QKV, pWS, pWS+1, WS_QKV_BYTES, add=WS_QKV)
        make_srd(a, SRD_FLG, pWS, pWS+1, WS_FLG_BYTES, add=WS_FLG)

    XA, WA, XF, WF, ACC = 4, 8, 16, 32, 64
    vm = VMQ(a)
    phi_addr()
    a('s_waitcnt lgkmcnt(0)')
    common_srds()
    phi_loads(vm)
    a(f's_lshr_b32 s25, s{sWAVE}, 1')
    a(f's_and_b32 s26, s{sWAVE}, 1')
    a('v_and_b32 v1, 31, v0')
    a('v_lshrrev_b32 v2, 5, v0')
    a('v_bfe_u32 v3, v0, 1, 3')
    a('v_xor_b32 v3, v3, v2')
    a('s_lshl_b32 s27, s25, 13')
    a('v_lshlrev_b32 v16, 7, v1')
    a('v_lshl_add_u32 v16, v3, 4, v16')
    a('v_add_u32 v16, s27, v16')
    for ks in range(4):
        a(f'v_xor_b32 v{XA+ks}, {32*ks}, v16')
    a('v_bfe_u32 v17, v0, 2, 2')
    a('v_lshlrev_b32 v18, 3, v2')
    a('v_add_u32 v18, v18, v17')
    a('v_lshlrev_b32 v18, 9, v18')
    a('v_and_b32 v19, 1, v0')
    a('v_lshl_add_u32 v18, v19, 7, v18')
    a('v_bfe_u32 v19, v0, 4, 1')
    a('v_lshl_add_u32 v19, v17, 1, v19')
    a('v_lshl_add_u32 v18, v19, 4, v18')
    a('v_bfe_u32 v19, v0, 1, 1')
    a('v_lshl_add_u32 v18, v19, 3, v18')
    a('s_lshl_b32 s27, s26, 8')
    a(f's_add_u32 s27, s27, {W_BASE}')
    a('v_add_u32 v18, s27, v18')
    for tt in range(4):
        a(f'v_xor_b32 v{WA+tt}, {32*tt}, v18')
        a(f'v_add_u32 v{WA+4+tt}, 0x10000, v{WA+tt}')
    vm.wait('phi')
    phi_pack()
    def reads(n):
        s, ks = divmod(n, 4)
        slot = s % 3; st = n % 2
        xr = [f'ds_read_b128 {vr(XF+8*st+4*tm,4)}, v{XA+ks} offset:{slot*XS_STRIDE+tm*4096}' for tm in range(2)]
        wr = []
        for tt in range(4):
            base = WA+tt if slot < 2 else WA+4+tt
            off0 = (slot*WS_STRIDE if slot < 2 else 0) + ks*8192
            for idx in range(2):
                wr.append(f'ds_read_b64_tr_b16 {vr(WF+16*st+4*tt+2*idx,2)}, v{base} offset:{off0+idx*2048}')
        return wr[0:2] + xr + wr[2:]
    a('s_barrier')
    stamp('B0')
    for r in reads(0): a(r)
    NST = 4*NSTAGE
    for n in range(NST):
        s, ks = divmod(n, 4)
        st = n % 2
        a('s_waitcnt lgkmcnt(0)')
        if ks == 3 and s+1 < NSTAGE:
            a('s_barrier')
            if opt.get('p1stages'): stamp(f'b{s+1}')
        nxt = reads(n+1) if n+1 < NST else []
        m = 0
        for tt in range(4):
            for tm in range(2):
                acc = ACC + 64*tm + 16*tt
                c = '0' if n == 0 else vr(acc,16)
                a(f'v_mfma_f32_32x32x16_bf16 {vr(acc,16)}, {vr(WF+16*st+4*tt,4)}, {vr(XF+8*st+4*tm,4)}, {c}')
                for r in nxt[2*m:2*m+2]: a(r)
                m += 1
    stamp('P1loop')
    a('s_mul_i32 s27, s20, 96')
    a('s_mul_i32 s29, s22, 12')
    a('s_mul_i32 s30, s26, 6')
    a('s_add_u32 s29, s29, s30')
    a('s_add_u32 s28, s27, s29')
    a('v_mul_u32_u24 v4, 3, v2')
    a('v_add_u32 v5, s28, v4')
    a(f's_mov_b32 s30, {HEAD_BYTES}')
    a('v_mul_lo_u32 v5, v5, s30')
    a('s_lshl_b32 s31, s25, 6')
    a('s_add_u32 s31, s31, s23')
    a('v_add_u32 v6, s31, v1')
    a('v_lshl_add_u32 v5, v6, 4, v5')
    a('v_add_u32 v4, s29, v4')
    a('v_mov_b32 v7, 0x3f80')
    for i3 in range(3):
        a(f'v_add_u32 v6, {i3}, v4')
        a('v_cmp_le_u32 vcc, 64, v6')
        a('s_nop 1')
        a(f'v_cndmask_b32 v{8+i3}, 0, v7, vcc')
    a('s_cmp_lg_u32 s20, 0')
    a('s_cbranch_scc1 L1_noscale')
    a('s_cmp_ge_u32 s22, 3')
    a('s_cbranch_scc1 L1_noscale')
    a(f'v_mov_b32 v7, 0x{f32bits(CA):08x}')
    for i3 in range(3):
        a(f'v_add_u32 v6, {i3}, v4')
        a('v_cmp_gt_u32 vcc, 32, v6')
        a('s_nop 1')
        a(f'v_cndmask_b32 v{12+i3}, 1.0, v7, vcc')
    for tm in range(2):
        for i3 in range(3):
            for e in range(20):
                r = ACC + 64*tm + 20*i3 + e
                a(f'v_mul_f32 v{r}, v{r}, v{12+i3}')
    a.label('L1_noscale')
    cnt = 0
    for tm in range(2):
        for i3 in range(3):
            base = 16 + 12*(cnt % 4); cnt += 1
            for dd in range(10):
                r = ACC + 64*tm + 20*i3 + 2*dd
                a(f'v_cvt_pk_bf16_f32 v{base+dd}, v{r}, v{r+1}')
            a(f'v_mov_b32 v{base+10}, v{8+i3}')
            a(f'v_mov_b32 v{base+11}, 0')
            for p in range(3):
                a(f's_mov_b32 s32, {i3*HEAD_BYTES + p*QPLANE}')
                a(f'buffer_store_dwordx4 {vr(base+4*p,4)}, v5, s[{SRD_QKV}:{SRD_QKV+3}], s32 offen offset:{tm*512} sc1')
    a('s_waitcnt vmcnt(0)')
    stamp('P1stored')
    a('s_branch L1_join')

    a.label('L1_loader')
    vm = VMQ(a)
    sLW = 30
    a(f's_sub_u32 s{sLW}, s{sWAVE}, 4')
    VXE, VXO, VWE, VWO = 10, 11, 12, 13
    VTA, VTS = 14, 16
    a('v_lshrrev_b32 v1, 3, v0')
    a('v_and_b32 v2, 7, v0')
    a('v_lshrrev_b32 v3, 4, v0')
    a('v_xor_b32 v3, v2, v3')
    a(f's_lshl_b32 s25, s{sLW}, 5')
    a('s_add_u32 s25, s25, s23')
    a('v_add_u32 v8, s25, v1')
    a('v_mul_u32_u24 v8, 1280, v8')
    a(f'v_lshl_add_u32 v{VXE}, v3, 4, v8')
    a('v_xor_b32 v3, 4, v3')
    a(f'v_lshl_add_u32 v{VXO}, v3, 4, v8')
    a('v_lshrrev_b32 v1, 5, v0')
    a(f's_lshl_b32 s25, s{sLW}, 4')
    a('v_add_u32 v8, s25, v1')
    a('v_mul_u32_u24 v8, 3840, v8')
    a('v_add_u32 v8, s24, v8')
    a('v_bfe_u32 v9, v0, 4, 1')
    a('v_mul_u32_u24 v9, 240, v9')
    a('v_add_u32 v8, v8, v9')
    a('v_bfe_u32 v9, v0, 3, 1')
    a('v_mul_u32_u24 v9, 120, v9')
    a('v_add_u32 v8, v8, v9')
    a('v_lshlrev_b32 v1, 1, v1')
    a('v_xor_b32 v3, v2, v1')
    a(f'v_lshl_add_u32 v{VWE}, v3, 4, v8')
    a('v_xor_b32 v3, 4, v3')
    a(f'v_lshl_add_u32 v{VWO}, v3, 4, v8')
    a('s_and_b32 s25, s2, 7')
    a('s_lshr_b32 s26, s2, 3')
    a('s_and_b32 s27, s25, 1')
    a('s_lshl_b32 s27, s27, 5')
    a('s_add_u32 s27, s27, s26')
    a('s_lshl_b32 s27, s27, 5')
    a('v_add_u32 v8, s27, v0')
    a('v_mul_u32_u24 v8, 1280, v8')
    a('v_subrev_u32 v9, 32, v0')
    a('v_cmp_le_u32 vcc, 15, v9')
    a('v_subrev_u32 v1, 15, v9')
    a('s_lshr_b32 s27, s25, 1')
    a('v_cndmask_b32 v1, v9, v1, vcc')
    a('v_cndmask_b32 v2, 0, 1, vcc')
    a('s_and_b32 s27, s27, 1')
    a('s_mul_i32 s27, s27, 1920')
    a('s_mul_i32 s28, s26, 7680')
    a('s_add_u32 s27, s27, s28')
    a('v_mul_u32_u24 v2, 3840, v2')
    a('v_lshl_add_u32 v2, v1, 7, v2')
    a('v_add_u32 v9, s27, v2')
    a('v_cmp_gt_u32 vcc, 32, v0')
    a(f'v_mov_b32 v{VTS}, {64*3840}')
    a('v_mov_b32 v1, 128')
    a(f'v_cndmask_b32 v{VTS}, v{VTS}, v1, vcc')
    a('v_cndmask_b32 v8, v9, v8, vcc')
    a(f's_lshl_b32 s26, s{sLW}, 12')
    a(f's_lshl_b32 s27, s{sLW}, 13')
    a(f's_add_u32 s27, s27, {W_BASE}')
    a('s_waitcnt lgkmcnt(0)')
    a('s_cmp_eq_u32 s20, 0')
    a(f's_cselect_b32 s4, s{pAX}, s{pBX}')
    a(f's_cselect_b32 s5, s{pAX+1}, s{pBX+1}')
    a(f's_cselect_b32 s6, s{pAW}, s{pBW}')
    a(f's_cselect_b32 s7, s{pAW+1}, s{pBW+1}')
    make_srd(a, 8, 4, 5, 2048*1280)
    make_srd(a, 12, 6, 7, 640*3840)
    def dma(s):
        slot = s % 3
        a(f's_add_u32 m0, s26, {slot*XS_STRIDE}')
        for uu in range(4):
            a(f's_mov_b32 s28, {s*128 + uu*(8*1280-1024)}')
            vm.issue(f'buffer_load_dwordx4 v{VXE if uu%2==0 else VXO}, s[8:11], s28 offen offset:{uu*1024} lds', f'dma{s}')
        for half in range(2):
            a(f's_add_u32 m0, s27, {slot*WS_STRIDE + half*4096}')
            for q in range(4):
                u = half*4+q
                a(f's_mov_b32 s28, {s*64*3840 + u*7680 - q*1024}')
                vm.issue(f'buffer_load_dwordx4 v{VWE if u%2==0 else VWO}, s[12:15], s28 offen offset:{q*1024} lds', f'dma{s}')
    dma(0)
    TS0, TA = 1, 4
    a('v_mov_b32 v1, s4')
    a('v_mov_b32 v2, s6')
    a(f'v_cndmask_b32 v{VTA}, v2, v1, vcc')
    a('v_mov_b32 v1, s5')
    a('v_mov_b32 v2, s7')
    a(f'v_cndmask_b32 v{VTA+1}, v2, v1, vcc')
    a(f'v_add_u32 v8, v8, v{VTS}')
    a(f'v_add_co_u32 v{VTA}, vcc, v{VTA}, v8')
    a('s_nop 1')
    a(f'v_addc_co_u32 v{VTA+1}, vcc, 0, v{VTA+1}, vcc')
    tcount = [0]
    def touch(tag):
        if opt.get('notouch'): return
        lab = f'L1_nt_{tag}'
        a(f's_cmp_lg_u32 s{sLW}, 0')
        a(f's_cbranch_scc1 {lab}')
        a('s_mov_b32 exec_hi, 0x3fffffff')
        a(f'global_load_dword v253, v[{VTA}:{VTA+1}], off')
        a('s_mov_b64 exec, -1')
        a(f'v_add_co_u32 v{VTA}, vcc, v{VTA}, v{VTS}')
        a('s_nop 1')
        a(f'v_addc_co_u32 v{VTA+1}, vcc, 0, v{VTA+1}, vcc')
        a.label(lab)
        vm.q.append('touch')
    def lwait(tag):
        n4 = vm.count_after(tag)
        last = max(i for i, t in enumerate(vm.q) if t == tag)
        n_o = sum(1 for t in vm.q[last+1:] if t != 'touch')
        if n4 == n_o:
            a(f's_waitcnt vmcnt({n4})')
        else:
            k = tcount[0]; tcount[0] += 1
            a(f's_cmp_lg_u32 s{sLW}, 0')
            a(f's_cbranch_scc1 L1_wo_{k}')
            a(f's_waitcnt vmcnt({n4})')
            a(f's_branch L1_wd_{k}')
            a.label(f'L1_wo_{k}')
            a(f's_waitcnt vmcnt({n_o})')
            a.label(f'L1_wd_{k}')
    for s in range(TS0, TA+1): touch(f'i{s}')
    dma(1)
    common_srds()
    make_srd(a, 32, pDBG, pDBG+1, 256)
    a('v_mov_b32 v9, 0')
    a(f's_add_u32 s25, s2, s{sLW}')
    a('s_cmp_lg_u32 s25, 0')
    a('s_cbranch_scc1 L1_nononce')
    a('s_memrealtime s[36:37]')
    a('s_waitcnt lgkmcnt(0)')
    a('s_or_b32 s36, s36, 1')
    a('v_mov_b32 v8, s36')
    a('s_mov_b64 exec, 1')
    a('buffer_store_dword v8, v9, s[32:35], 0 offen sc1')
    a('s_mov_b64 exec, -1')
    a('s_waitcnt vmcnt(0)')
    a.label('L1_nononce')
    lwait('dma0')
    a('s_barrier')
    WJ = 20
    def wo_loads(tag, dst, fid):
        a(f's_cmp_ge_u32 s{fid}, 800')
        a(f's_cselect_b32 s48, s{pBWO}, s{pAWO}')
        a(f's_cselect_b32 s49, s{pBWO+1}, s{pAWO+1}')
        a('s_cselect_b32 s36, 800, 0')
        a('s_mov_b32 s50, 819200')
        a(f's_mov_b32 s51, {SRD3}')
        a(f's_sub_u32 s36, s{fid}, s36')
        a('s_mul_hi_u32 s37, s36, 42949673')
        a('s_mul_i32 s38, s37, 100')
        a('s_sub_u32 s38, s36, s38')
        a('s_mul_hi_u32 s39, s38, 858993460')
        a('s_mul_i32 s40, s39, 5')
        a('s_sub_u32 s40, s38, s40')
        a('s_mul_i32 s37, s37, 160')
        a('s_lshl_b32 s40, s40, 5')
        a('s_add_u32 s37, s37, s40')
        a('s_lshl_b32 s39, s39, 2')
        a('v_lshrrev_b32 v1, 4, v0')
        a('v_add_u32 v1, s39, v1')
        a('v_mul_u32_u24 v2, 52429, v1')
        a('v_lshrrev_b32 v2, 18, v2')
        a('v_mul_u32_u24 v3, 5, v2')
        a('v_sub_u32 v3, v1, v3')
        a('v_mul_u32_u24 v2, 40, v2')
        a('v_lshrrev_b32 v6, 1, v3')
        a('v_mul_u32_u24 v6, 20, v6')
        a('v_and_b32 v7, 1, v3')
        a('v_lshl_add_u32 v6, v7, 3, v6')
        a('v_add_u32 v7, 4, v6')
        a('v_cmp_eq_u32 vcc, 4, v3')
        a('s_nop 1')
        a('v_cndmask_b32 v6, v6, 16, vcc')
        a('v_cndmask_b32 v7, v7, 36, vcc')
        a('v_add_u32 v6, v6, v2')
        a('v_add_u32 v7, v7, v2')
        a('v_and_b32 v1, 15, v0')
        a('v_lshlrev_b32 v1, 1, v1')
        a('v_mul_u32_u24 v6, 1280, v6')
        a('v_mul_u32_u24 v7, 1280, v7')
        a('v_add_u32 v6, v6, v1')
        a('v_add_u32 v7, v7, v1')
        for j in range(8):
            vm.issue(f'buffer_load_ushort v{dst+j}, v{6 if j<4 else 7}, s[48:51], s37 offen offset:{(j%4)*1280}', tag)
    for s in range(0, NSTAGE):
        if s > 0:
            lwait(f'dma{s}')
            a('s_barrier')
        if s + TA + 1 < NSTAGE: touch(f's{s}')
        if s + 2 < NSTAGE: dma(s+2)
        if s == 1:
            phi_addr()
            phi_loads(vm)
        if s == 4:
            a('s_lshl_b32 s44, s20, 7')
            a('s_lshl_b32 s45, s22, 4')
            a('s_add_u32 s44, s44, s45')
            a('s_add_u32 s44, s44, s21')
            a('s_lshl_b32 s46, s44, 2')
            a(f's_add_u32 s46, s46, s{sLW}')
            a('s_add_u32 s47, s46, 1024')
            wo_loads('wo0', WJ, 46)
            wo_loads('wo1', WJ+8, 47)
            a('v_mov_b32 v9, 0')
            vm.issue('buffer_load_dword v18, v9, s[32:35], 0 offen sc1', 'nonce')
    stamp('Ldone')
    vm.wait_all()
    phi_pack()
    make_srd(a, SRD_WO, pWS, pWS+1, WS_WO_BYTES, add=WS_WO)
    a('v_lshlrev_b32 v5, 4, v0')
    for k, fid in ((0, 46), (1, 47)):
        for jj in range(4):
            a(f'v_lshl_or_b32 v{40+4*k+jj}, v{WJ+8*k+1+2*jj}, 16, v{WJ+8*k+2*jj}')
        a(f's_lshl_b32 s39, s{fid}, 10')
        a(f'buffer_store_dwordx4 {vr(40+4*k,4)}, v5, s[{SRD_WO}:{SRD_WO+3}], s39 offen sc1')
    a(f'v_readfirstlane_b32 s{sNONCE}, v18')
    a(f's_cmp_lg_u32 s{sNONCE}, 0')
    a('s_cbranch_scc1 L1_havenonce')
    a('s_mov_b32 s36, 0')
    a.label('L1_noncepoll')
    a('buffer_load_dword v18, v9, s[32:35], 0 offen sc1')
    a('s_waitcnt vmcnt(0)')
    a(f'v_readfirstlane_b32 s{sNONCE}, v18')
    a('s_add_u32 s36, s36, 1')
    a(f's_cmp_lg_u32 s{sNONCE}, 0')
    a('s_cbranch_scc1 L1_havenonce')
    a('s_cmp_lt_u32 s36, 0x100000')
    a('s_cbranch_scc0 L1_havenonce')
    a('s_sleep 2')
    a('s_branch L1_noncepoll')
    a.label('L1_havenonce')
    a('s_waitcnt vmcnt(0)')

    a.label('L1_join')
    a('s_barrier')
    stamp('S1a')
    def poll(tag, vaddr, nl):
        a(f's_mov_b32 s{sTMP}, 0')
        a.label(f'L_poll_{tag}')
        if nl < 32:
            a(f's_mov_b64 exec, {hex((1 << nl) - 1)}')
        else:
            a(f's_mov_b32 exec_hi, {hex((1 << (nl-32)) - 1)}')
        a(f'buffer_load_dword v{vaddr+1}, v{vaddr}, s[{SRD_FLG}:{SRD_FLG+3}], 0 offen sc1')
        a('s_waitcnt vmcnt(0)')
        a(f'v_cmp_ne_u32 vcc, s{sNONCE}, v{vaddr+1}')
        a('s_mov_b64 exec, -1')
        a(f's_add_u32 s{sTMP}, s{sTMP}, 1')
        a(f's_cbranch_vccz L_polldone_{tag}')
        a(f's_cmp_lt_u32 s{sTMP}, 0x100000')
        a(f's_cbranch_scc0 L_polldone_{tag}')
        a('s_sleep 1')
        a(f's_branch L_poll_{tag}')
        a.label(f'L_polldone_{tag}')
    def set_flag(base, idx_sgpr, vtmp):
        a(f's_lshl_b32 s{sTMP}, s{idx_sgpr}, 7')
        a(f's_add_u32 s{sTMP}, s{sTMP}, {base - WS_FLG}')
        a(f'v_mov_b32 v{vtmp}, s{sTMP}')
        a(f'v_mov_b32 v{vtmp+1}, s{sNONCE}')
        a('s_mov_b64 exec, 1')
        a(f'buffer_store_dword v{vtmp+1}, v{vtmp}, s[{SRD_FLG}:{SRD_FLG+3}], 0 offen sc1')
        a('s_mov_b64 exec, -1')
    a(f's_cmp_eq_u32 s{sWAVE}, 4')
    a('s_cbranch_scc0 L2_nosync1')
    a('s_lshl_b32 s44, s20, 7')
    a('s_lshl_b32 s45, s22, 4')
    a('s_add_u32 s45, s44, s45')
    a('s_add_u32 s45, s45, s21')
    set_flag(WS_F1, 45, T)
    a.label('L2_nosync1')

    a(f's_lshr_b32 s{sPAR}, s{sWAVE}, 2')
    a(f's_and_b32 s{sGRP}, s{sWAVE}, 3')
    a(f's_lshl_b32 s{sT0}, s{sBLK}, 8')
    a(f's_lshl_b32 s44, s{sGRP}, 6')
    a(f's_add_u32 s{sT0}, s{sT0}, s44')
    a('v_and_b32 v1, 31, v0')
    a('v_lshrrev_b32 v2, 5, v0')
    a(f'v_add_u32 v3, s{sT0}, v1')
    a('v_lshlrev_b32 v3, 4, v3')
    a(f'v_mul_u32_u24 v{RQ}, {QPLANE}, v2')
    a(f'v_add_u32 v{RQ}, v{RQ}, v3')
    a(f'v_add_u32 v{RQ+1}, {2*QPLANE}, v3')
    a(f's_lshl_b32 s44, s{sPAR}, 9')
    a(f'v_add_u32 v{RA}, s44, v{RQ}')
    a(f'v_add_u32 v{RA+1}, s44, v{RQ+1}')
    a(f's_lshl_b32 s44, s{sPAR}, 5')
    a(f's_add_u32 s{sT0}, s{sT0}, s44')
    a(f'v_lshlrev_b32 v{VL16}, 4, v0')
    make_srd(a, SRD_O, pWS, pWS+1, WS_O_BYTES, add=WS_O)
    make_srd(a, SRD_KV, pWS, pWS+1, WS_KV_BYTES, add=WS_KV)
    make_srd(a, SRD_WO, pWS, pWS+1, WS_WO_BYTES, add=WS_WO)
    a(f's_lshl_b32 s{sFI}, s{sHEAD}, 3')
    a(f's_add_u32 s{sFI}, s{sFI}, s{sBLK}')
    a(f's_add_u32 s45, s{sHEAD}, 32')
    a(f's_mul_i32 s45, s45, {HEAD_BYTES}')
    for i in range(3):
        a(f's_mul_i32 s46, s{sWAVE}, 3')
        a(f's_add_u32 s46, s46, {i}')
        a('s_lshr_b32 s47, s46, 2')
        a('s_and_b32 s46, s46, 3')
        a('s_lshl_b32 s46, s46, 10')
        a('s_cmp_lt_u32 s47, 3')
        a(f's_cselect_b32 s48, 0, {32*HEAD_BYTES - 3*QPLANE}')
        a(f's_cselect_b32 s49, 0, {(VOFF - 3*VPL) & 0xffffffff}')
        a(f's_cselect_b32 s50, 0, {VPL-4096}')
        a('s_add_u32 s50, s50, 4096')
        a(f's_mul_i32 s51, s47, {QPLANE}')
        a('s_add_u32 s51, s51, s48')
        a('s_add_u32 s51, s51, s45')
        a(f's_add_u32 s{sG+i}, s51, s46')
        a('s_mul_i32 s51, s47, s50')
        a('s_add_u32 s51, s51, s49')
        a(f's_add_u32 s{sL+i}, s51, s46')
    a(f's_mul_i32 s46, s{sBLK}, 24')
    a(f's_mul_i32 s47, s{sWAVE}, 3')
    a('s_add_u32 s46, s46, s47')
    a(f'v_add_u32 v3, s46, v0')
    a(f'v_lshrrev_b32 v{T+4}, 5, v3')
    a('v_and_b32 v3, 31, v3')
    a('v_lshlrev_b32 v3, 7, v3')
    a(f'v_mul_u32_u24 v{T+5}, {QPLANE}, v{T+4}')
    a(f'v_add_u32 v3, v3, v{T+5}')
    a(f'v_mov_b32 v{T+5}, {32*HEAD_BYTES - 3*QPLANE}')
    a(f'v_cmp_le_u32 vcc, 3, v{T+4}')
    a('s_nop 1')
    a(f'v_cndmask_b32 v{T+5}, 0, v{T+5}, vcc')
    a(f'v_add3_u32 v{VT}, v3, v{T+5}, s45')
    def main_addresses(parity):
        a('v_and_b32 v1, 31, v0')
        a('v_lshrrev_b32 v2, 5, v0')
        a('v_and_b32 v3, 19, v1')
        a(f'v_bfe_u32 v{T+4}, v1, 2, 1')
        a(f'v_lshl_or_b32 v3, v{T+4}, 3, v3')
        a(f'v_bfe_u32 v{T+4}, v1, 3, 1')
        a(f'v_lshl_or_b32 v3, v{T+4}, 2, v3')
        if parity:
            a(f's_lshl_b32 s44, s{sPAR}, 5')
            a('v_add_u32 v3, s44, v3')
        a('v_lshlrev_b32 v3, 4, v3')
        a(f'v_lshl_add_u32 v{VK}, v2, 12, v3')
        a(f'v_add_u32 v{VK2}, {2*4096}, v3')
        a(f'v_bfe_u32 v{T+4}, v0, 2, 2')
        a(f'v_lshl_add_u32 v{T+4}, v2, 3, v{T+4}')
        if parity:
            a(f'v_add_u32 v{T+4}, s44, v{T+4}')
        a(f'v_lshlrev_b32 v{T+4}, 4, v{T+4}')
        a(f'v_bfe_u32 v{T+5}, v0, 4, 1')
        a(f'v_and_b32 v{T+6}, 3, v0')
        a(f'v_lshl_add_u32 v{T+5}, v{T+5}, 2, v{T+6}')
        a(f'v_lshrrev_b32 v{T+6}, 1, v{T+5}')
        a(f'v_min_u32 v{T+6}, 2, v{T+6}')
        a(f'v_and_b32 v{T+5}, 1, v{T+5}')
        a(f'v_lshl_add_u32 v{T+4}, v{T+5}, 3, v{T+4}')
        a(f'v_mul_u32_u24 v{T+7}, {VPL}, v{T+6}')
        a(f'v_add3_u32 v{VV}, v{T+7}, v{T+4}, {0}')
        a(f'v_add_u32 v{VV}, {VOFF}, v{VV}')
    main_addresses(True)
    a(f's_lshl_b32 s46, s{sWAVE}, 12')
    a(f's_add_u32 s46, s46, {BS0}')
    a(f'v_bfe_u32 v{T+4}, v0, 2, 2')
    a(f'v_lshl_add_u32 v{T+4}, v2, 3, v{T+4}')
    a(f'v_lshlrev_b32 v{T+7}, 4, v{T+4}')
    a(f'v_lshl_add_u32 v{T+7}, v{T+5}, 3, v{T+7}')
    a(f'v_lshl_add_u32 v{T+7}, v{T+6}, 9, v{T+7}')
    a(f'v_add_u32 v{VBT}, s46, v{T+7}')
    a('s_add_u32 s46, s46, 1536')
    a('v_mul_u32_u24 v3, 80, v1')
    a(f'v_mul_u32_u24 v{T+6}, 40, v2')
    a(f'v_add3_u32 v{PKW}, v3, v{T+6}, s46')
    a(f'v_mul_u32_u24 v{T+4}, 80, v{T+4}')
    a(f'v_and_b32 v{T+6}, 1, v0')
    a(f'v_mul_u32_u24 v{T+6}, 40, v{T+6}')
    a(f'v_add_u32 v{T+4}, v{T+4}, v{T+6}')
    a(f'v_bfe_u32 v{T+6}, v0, 4, 1')
    a(f'v_bfe_u32 v{T+7}, v0, 1, 1')
    a(f'v_lshl_add_u32 v{T+6}, v{T+6}, 1, v{T+7}')
    a(f'v_lshl_add_u32 v{T+4}, v{T+6}, 3, v{T+4}')
    a(f'v_add_u32 v{PKT}, s46, v{T+4}')
    for r in list(range(Q2, Q2+8)) + list(range(X2, X2+4)):
        a(f'v_mov_b32 v{r}, 0')
    for j in range(32):
        a(f'v_mov_b32 v{O+j}, 0')
    for j in range(4, 8): a(f'v_mov_b32 v{P+j}, 0')
    for j in range(8): a(f'v_mov_b32 v{VF+8+j}, 0')
    a(f's_cmp_eq_u32 s{sWAVE}, 4')
    a('s_cbranch_scc0 L2_nopoll1')
    D = GA
    a(f's_add_u32 s46, s{sHEAD}, 32')
    a('s_mul_hi_u32 s46, s46, 357913942')
    a(f's_add_u32 s47, s{sHEAD}, 64')
    a('s_mul_hi_u32 s47, s47, 357913942')
    a(f's_mul_hi_u32 s48, s{sHEAD}, 357913942')
    a('s_lshl_b32 s46, s46, 4')
    a('s_lshl_b32 s47, s47, 4')
    a('s_lshl_b32 s48, s48, 4')
    a(f's_lshl_b32 s49, s{sBLK}, 1')
    a(f'v_and_b32 v{D+2}, 15, v0')
    a(f'v_mov_b32 v{D+3}, s46')
    a(f'v_mov_b32 v{D+4}, s47')
    a('v_cmp_gt_u32 vcc, 16, v0')
    a('s_nop 1')
    a(f'v_cndmask_b32 v{D+3}, v{D+4}, v{D+3}, vcc')
    a(f'v_add_u32 v{D+2}, v{D+2}, v{D+3}')
    a(f'v_subrev_u32 v{D+3}, 32, v0')
    a(f'v_lshrrev_b32 v{D+4}, 1, v{D+3}')
    a(f'v_and_b32 v{D+3}, 1, v{D+3}')
    a(f'v_add_u32 v{D+3}, s49, v{D+3}')
    a(f'v_mov_b32 v{D+5}, s48')
    for pp, src in ((1, 48), (2, 46), (3, 47)):
        a(f's_add_u32 s50, s{src}, 128')
        a(f'v_mov_b32 v{D+6}, s50')
        a(f'v_cmp_eq_u32 vcc, {pp}, v{D+4}')
        a('s_nop 1')
        a(f'v_cndmask_b32 v{D+5}, v{D+5}, v{D+6}, vcc')
    a(f'v_add_u32 v{D+3}, v{D+3}, v{D+5}')
    a('v_cmp_gt_u32 vcc, 32, v0')
    a('s_nop 1')
    a(f'v_cndmask_b32 v{D+2}, v{D+3}, v{D+2}, vcc')
    a(f'v_lshlrev_b32 v{D+2}, 7, v{D+2}')
    poll('s1', D+2, 40)
    a.label('L2_nopoll1')
    a('s_barrier')
    stamp('S1b')

    vm = VMQ(a)
    QS = f's[{SRD_QKV}:{SRD_QKV+3}]'
    def load_rows(dst1, dst2, ra, gh_sgpr, tag, off=0):
        vm.issue(f'buffer_load_dwordx4 {vr(dst1,4)}, v{ra}, {QS}, s{gh_sgpr} offen offset:{off} sc1', tag)
        a('s_mov_b32 exec_hi, 0')
        vm.issue(f'buffer_load_dwordx4 {vr(dst2,4)}, v{ra+1}, {QS}, s{gh_sgpr} offen offset:{off} sc1', tag)
        a('s_mov_b64 exec, -1')
    def touch_kv(c):
        a(f's_mov_b32 s{sTMP}, {c*4096}')
        a('s_mov_b64 exec, 7')
        vm.issue(f'buffer_load_dword v253, v{VT}, {QS}, s{sTMP} offen sc1', 'touch')
        a('s_mov_b64 exec, -1')
    def dma_chunk(c):
        for i in range(3):
            a(f's_add_u32 m0, s{sL+i}, {(c % 4)*SLOT}')
            a(f's_add_u32 s{sTMP}, s{sG+i}, {c*4096}')
            vm.issue(f'buffer_load_dwordx4 v{VL16}, {QS}, s{sTMP} offen sc1 lds', f'c{c}')
    for c in range(4): touch_kv(c)
    a(f's_mul_i32 s45, s{sHEAD}, {HEAD_BYTES}')
    load_rows(Q1, Q2, RQ, 45, 'QA', 0)
    load_rows(Q1+4, Q2+4, RQ, 45, 'QA', 512)
    dma_chunk(0)
    dma_chunk(1)
    a(f's_add_u32 s45, s{sHEAD}, {96+32}')
    a(f's_mul_i32 s45, s45, {HEAD_BYTES}')
    load_rows(X1, X2, RA, 45, 'kB')
    a(f's_add_u32 s46, s{sHEAD}, {96+64}')
    a(f's_mul_i32 s46, s46, {HEAD_BYTES}')
    a(f's_lshl_b32 s47, s{sWAVE}, 12')
    a(f's_add_u32 s47, s47, {BS0}')
    a('s_mov_b32 m0, s47')
    a(f's_sub_u32 s48, s46, 1024')
    vm.issue(f'buffer_load_dwordx4 v{RA}, {QS}, s46 offen sc1 lds', 'vB')
    a('s_mov_b32 exec_hi, 0')
    vm.issue(f'buffer_load_dwordx4 v{RA+1}, {QS}, s48 offen offset:1024 sc1 lds', 'vB')
    a('s_mov_b64 exec, -1')
    dma_chunk(2)
    stamp('P2iss')

    def featmap(tag, x1, x2, pk, out):
        EN = T
        t0, t1, t2, t3 = T+10, T+11, T+12, T+13
        a(f'v_mfma_f32_32x32x16_bf16 {vr(pk,16)}, {vr(F1,4)}, {vr(x1,4)}, 0')
        a(f'v_mfma_f32_32x32x16_bf16 {vr(pk,16)}, {vr(F2,4)}, {vr(x2,4)}, {vr(pk,16)}')
        a(f's_mov_b32 s{sTMP}, 0x{f32bits(LOG2E):08x}')
        a('s_nop 15')
        Y = T+14
        for j in range(10):
            a(f'v_mul_f32 v{Y+j}, s{sTMP}, v{pk+j}')
        for j in range(10):
            a(f'v_exp_f32 v{pk+j}, v{Y+j}')
            a(f'v_exp_f32 v{EN+j}, -v{Y+j}')
        def sums():
            a(f'v_add_f32 v{t0}, v{pk}, v{pk+1}')
            a(f'v_add_f32 v{t1}, v{EN}, v{EN+1}')
            for j in range(2, 10):
                a(f'v_add_f32 v{t0}, v{t0}, v{pk+j}')
                a(f'v_add_f32 v{t1}, v{t1}, v{EN+j}')
            a('s_nop 1')
            a(f'v_permlane32_swap_b32 v{t0}, v{t1}')
            a('s_nop 1')
            a(f'v_add_f32 v{t0}, v{t0}, v{t1}')
            a(f'v_mov_b32 v{t1}, v{t0}')
            a('s_nop 1')
            a(f'v_permlane32_swap_b32 v{t0}, v{t1}')
            a('s_nop 1')
        sums()
        a(f'v_min_f32 v{t2}, v{t0}, v{t1}')
        a(f'v_max_f32 v{t3}, v{t0}, v{t1}')
        a(f'v_add_f32 v{t3}, v{t3}, v{t2}')
        a(f's_mov_b32 s{sTMP}, 0x1f800000')
        a(f's_mov_b32 s{sTMP+1}, 0x5f800000')
        a(f'v_cmp_nle_f32 vcc, s{sTMP}, v{t2}')
        a(f'v_cmp_nge_f32 s[{sTMP+2}:{sTMP+3}], s{sTMP+1}, v{t3}')
        a('s_nop 1')
        a(f's_or_b64 vcc, vcc, s[{sTMP+2}:{sTMP+3}]')
        if not force_slow:
            a(f's_cbranch_vccz L2_fm_ok_{tag}')
        a(f'v_max3_f32 v{t0}, v{Y}, v{Y+1}, v{Y+2}')
        a(f'v_min3_f32 v{t1}, v{Y}, v{Y+1}, v{Y+2}')
        for j in range(3, 9, 2):
            a(f'v_max3_f32 v{t0}, v{t0}, v{Y+j}, v{Y+j+1}')
            a(f'v_min3_f32 v{t1}, v{t1}, v{Y+j}, v{Y+j+1}')
        a(f'v_max_f32 v{t0}, v{t0}, v{Y+9}')
        a(f'v_min_f32 v{t1}, v{t1}, v{Y+9}')
        a(f'v_mov_b32 v{t2}, v{t0}')
        a(f'v_mov_b32 v{t3}, v{t1}')
        a(f'v_mov_b32 v{Y+10}, v{t0}')
        a(f'v_mov_b32 v{Y+11}, v{t1}')
        a('s_nop 1')
        a(f'v_permlane32_swap_b32 v{t2}, v{Y+10}')
        a(f'v_permlane32_swap_b32 v{t3}, v{Y+11}')
        a('s_nop 1')
        a(f'v_max_f32 v{t2}, v{t2}, v{Y+10}')
        a(f'v_min_f32 v{t3}, v{t3}, v{Y+11}')
        for j in range(10):
            a(f'v_sub_f32 v{pk+j}, v{Y+j}, v{t2}')
            a(f'v_sub_f32 v{EN+j}, v{t3}, v{Y+j}')
        for j in range(10):
            a(f'v_exp_f32 v{pk+j}, v{pk+j}')
            a(f'v_exp_f32 v{EN+j}, v{EN+j}')
        a('s_nop 0')
        sums()
        a.label(f'L2_fm_ok_{tag}')
        a(f'v_rcp_f32 v{t0}, v{t0}')
        a(f'v_rcp_f32 v{t1}, v{t1}')
        a('s_nop 0')
        for j in range(10):
            a(f'v_mul_f32 v{pk+j}, v{pk+j}, v{t0}')
            a(f'v_mul_f32 v{EN+j}, v{EN+j}, v{t1}')
        for j in range(5):
            a(f'v_cvt_pk_bf16_f32 v{out+j}, v{pk+2*j}, v{pk+2*j+1}')
            a(f'v_cvt_pk_bf16_f32 v{out+5+j}, v{EN+2*j}, v{EN+2*j+1}')

    def store_o(src, branch, eps, tag):
        t0, t1, t2, t3, t4 = T, T+1, T+2, T+3, T+4
        a(f'v_mov_b32 v{t0}, v{src+8}')
        a(f'v_mov_b32 v{t1}, v{src+8}')
        a('s_nop 1')
        a(f'v_permlane32_swap_b32 v{t0}, v{t1}')
        a('s_nop 1')
        if eps:
            a(f'v_add_f32 v{t1}, 0x{f32bits(eps):08x}, v{t1}')
        a(f'v_rcp_f32 v{t0}, v{t1}')
        a('s_nop 0')
        for j in range(10):
            a(f'v_mul_f32 v{T+16+j}, v{src+j}, v{t0}')
        a(f'v_mul_f32 v{T+26}, v{src+10}, v{t0}')
        a(f'v_mul_f32 v{T+27}, v{src+11}, v{t0}')
        for j in range(6):
            a(f'v_cvt_pk_bf16_f32 v{T+8+j}, v{T+16+2*j}, v{T+16+2*j+1}')
        a(f'v_lshrrev_b32 v{t2}, 5, v0')
        a(f'v_permlane32_swap_b32 v{T+8}, v{T+10}')
        a(f'v_permlane32_swap_b32 v{T+9}, v{T+11}')
        a(f'v_and_b32 v{t3}, 31, v0')
        a(f'v_add_u32 v{t3}, s{sT0}, v{t3}')
        a(f'v_lshrrev_b32 v{t4}, 4, v{t3}')
        a(f'v_mul_u32_u24 v{t4}, 20480, v{t4}')
        a(f'v_and_b32 v{t3}, 15, v{t3}')
        a(f'v_lshl_add_u32 v{t4}, v{t3}, 4, v{t4}')
        a(f'v_mov_b32 v{T+28}, v{T+8}')
        a(f'v_mov_b32 v{T+29}, v{T+9}')
        a(f'v_mov_b32 v{T+30}, v{T+10}')
        a(f'v_mov_b32 v{T+31}, v{T+11}')
        a(f's_lshr_b32 s{sTMP}, s{sHEAD}, 1')
        a(f's_mul_i32 s{sTMP}, s{sTMP}, 5')
        a(f's_and_b32 s{sTMP+1}, s{sHEAD}, 1')
        a(f's_lshl_b32 s{sTMP+2}, s{sTMP+1}, 1')
        a(f's_add_u32 s{sTMP+2}, s{sTMP+2}, s{sTMP}')
        a(f'v_add_u32 v{T+5}, s{sTMP+2}, v{t2}')
        a(f'v_lshl_add_u32 v{T+5}, v{T+5}, 8, v{t4}')
        a(f's_add_u32 s{sTMP}, s{sTMP}, 4')
        a(f's_lshl_b32 s{sTMP}, s{sTMP}, 8')
        a(f's_lshl_b32 s{sTMP+1}, s{sTMP+1}, 3')
        a(f's_add_u32 s{sTMP}, s{sTMP}, s{sTMP+1}')
        a(f'v_add_u32 v{T+6}, s{sTMP}, v{t4}')
        a(f's_mov_b32 s{sTMP+1}, {branch*128*20*1024}')
        vm.issue(f'buffer_store_dwordx4 {vr(T+28,4)}, v{T+5}, s[{SRD_O}:{SRD_O+3}], s{sTMP+1} offen sc1', tag)
        a('s_mov_b32 exec_hi, 0')
        vm.issue(f'buffer_store_dwordx2 {vr(T+12,2)}, v{T+6}, s[{SRD_O}:{SRD_O+3}], s{sTMP+1} offen sc1', tag)
        a('s_mov_b64 exec, -1')

    def kreads(j, st, nxt):
        vk, vk2 = (VKN, VK2N) if nxt else (VK, VK2)
        return [f'ds_read_b128 {vr(KA1+4*st,4)}, v{vk} offset:{1024*j}',
                f'ds_read_b64 {vr(KA2+4*st,2)}, v{vk2} offset:{1024*j}']
    def vreads(j, st, nxt, step=64):
        vv = VVN if nxt else VV
        return [f'ds_read_b64_tr_b16 {vr(VF+8*st+4*t+2*idx,2)}, v{vv} offset:{(step*j+16*t+4*idx)*16}' for t in range(2) for idx in range(2)]
    def qk1(sset, kset, u): return f'v_mfma_f32_32x32x16_bf16 {vr(S+16*sset,16)}, {vr(KA1+4*kset,4)}, {vr(Q1+4*u,4)}, 0'
    def qk2(sset, kset, u): return f'v_mfma_f32_32x32x8_bf16 {vr(S+16*sset,16)}, {vr(KA2+4*kset,2)}, {vr(Q2+4*u,2)}, {vr(S+16*sset,16)}'
    def pv(t, vset, u): return f'v_mfma_f32_32x32x16_bf16 {vr(O+16*u,16)}, {vr(VF+8*vset+4*t,4)}, {vr(P+4*t,4)}, {vr(O+16*u,16)}'

    vm.wait(('QA', 'c0'))
    a('s_barrier')
    stamp('X0')
    for r in kreads(0, 0, False): a(r)
    for r in vreads(0, 0, False): a(r)
    a('s_waitcnt lgkmcnt(0)')
    a(qk1(0, 0, 0)); a(qk2(0, 0, 0))
    a(f's_mov_b32 s{sC}, 0')
    a('s_nop 7')
    a.raw('.p2align 6')
    a.label('L2_loop')
    for n in range(8):
        j, u = divmod(n, 2)
        kt = j % 2
        s = S + 16*u
        e = lambda q: f'v_exp_f32 v{s+q}, v{s+q}'
        c = lambda q: f'v_cvt_pk_bf16_f32 v{P+q}, v{s+2*q}, v{s+2*q+1}'
        if n == 6:
            for cc in range(NCH):
                a(f's_cmp_eq_u32 s{sC}, {cc}')
                a(f's_cbranch_scc1 L2_sec{cc}')
            a.label('L2_secret')
            a(f's_and_b32 s{sTMP}, s{sC}, 3')
            a(f's_mov_b32 s{sD}, {SLOT}')
            a(f's_cmp_eq_u32 s{sTMP}, 3')
            a(f's_cselect_b32 s{sD}, {(-3*SLOT) & 0xffffffff}, s{sD}')
            a(f'v_add_u32 v{VKN}, s{sD}, v{VK}')
            a(f'v_add_u32 v{VK2N}, s{sD}, v{VK2}')
            a(f'v_add_u32 v{VVN}, s{sD}, v{VV}')
        n_kset = kt if u == 0 else 1-kt
        n_u = 1-u
        p_vset = (1-kt) if u == 0 else kt
        rd_a = kreads((j+1) % 4, 1-kt, j == 3) if u == 0 else []
        rd_b = vreads((j+1) % 4, 1-kt, j == 3) if u == 1 else []
        a('s_waitcnt lgkmcnt(0)')
        a(qk1(n_u, n_kset, n_u))
        for r in rd_a: a(r)
        a(e(0)); a(e(1)); a(e(2)); a(e(3)); a(c(0))
        a(pv(1, p_vset, n_u))
        a(e(4)); a(c(1)); a(e(5)); a(e(6)); a(e(7)); a(c(2))
        a(qk2(n_u, n_kset, n_u))
        for r in rd_b: a(r)
        a(e(8)); a(c(3)); a(e(9)); a(e(10)); a(e(11)); a(c(4))
        a(pv(0, kt, u))
        a(e(12)); a(c(5)); a(e(13)); a(e(14)); a(e(15)); a(c(6)); a(c(7))
    a(f'v_mov_b32 v{VK}, v{VKN}')
    a(f'v_mov_b32 v{VK2}, v{VK2N}')
    a(f'v_mov_b32 v{VV}, v{VVN}')
    a(f's_add_u32 s{sC}, s{sC}, 1')
    a(f's_cmp_lt_u32 s{sC}, {NCH}')
    a('s_cbranch_scc1 L2_loop')
    a('s_branch L2_tail')

    def p3role():
        a('s_and_b32 s44, s2, 7')
        a('s_lshr_b32 s45, s2, 3')
        a(f's_lshr_b32 s{P3BR}, s44, 2')
        a(f's_and_b32 s{P3RB}, s44, 3')
        a(f's_lshl_b32 s{P3RB}, s{P3RB}, 2')
        a('s_lshr_b32 s46, s45, 3')
        a(f's_add_u32 s{P3RB}, s{P3RB}, s46')
        a(f's_and_b32 s{P3CB}, s45, 7')
    EX48 = ('s_mov_b32 exec_lo, -1', 's_mov_b32 exec_hi, 0xffff')
    for cc in range(NCH):
        a.label(f'L2_sec{cc}')
        if cc + 1 < NCH:
            vm.wait(f'c{cc+1}')
        else:
            vm.wait_all()
        if cc in (0,):
            pass
        if opt.get('p2sec'): stamp(f'w{cc}')
        a('s_barrier')
        if opt.get('p2sec'): stamp(f's{cc}')
        if cc + 4 < NCH: touch_kv(cc+4)
        if cc + 3 < NCH: dma_chunk(cc+3)
        if cc == 0:
            vm.wait('vB')
            featmap('k', X1, X2, PKR, PH)
            for j in range(5):
                a(f'ds_write_b64 v{PKW}, {vr(PH+2*j,2)} offset:{8*j}')
            a('s_waitcnt lgkmcnt(0)')
            for Tt in range(2):
                for t in range(2):
                    for idx in range(2):
                        a(f'ds_read_b64_tr_b16 {vr(AF+8*Tt+4*t+2*idx,2)}, v{PKT} offset:{32*Tt + (16*t+4*idx)*80}')
            for t in range(2):
                for idx in range(2):
                    a(f'ds_read_b64_tr_b16 {vr(BF+4*t+2*idx,2)}, v{VBT} offset:{(16*t+4*idx)*16}')
            a('s_waitcnt lgkmcnt(0)')
            KV0, KV1 = PKR, T
            a(f'v_mfma_f32_32x32x16_bf16 {vr(KV0,16)}, {vr(AF,4)}, {vr(BF,4)}, 0')
            a(f'v_mfma_f32_32x32x16_bf16 {vr(KV1,16)}, {vr(AF+8,4)}, {vr(BF,4)}, 0')
            a(f'v_mfma_f32_32x32x16_bf16 {vr(KV0,16)}, {vr(AF+4,4)}, {vr(BF+4,4)}, {vr(KV0,16)}')
            a(f'v_mfma_f32_32x32x16_bf16 {vr(KV1,16)}, {vr(AF+12,4)}, {vr(BF+4,4)}, {vr(KV1,16)}')
            a('v_and_b32 v1, 31, v0')
            a('v_lshrrev_b32 v2, 5, v0')
            a('v_mul_u32_u24 v2, 24, v2')
            a('v_add_u32 v2, v2, v1')
            a(f's_lshl_b32 s46, s{sWAVE}, 12')
            a(f's_add_u32 s46, s46, {BS0}')
            a('v_lshlrev_b32 v2, 4, v2')
            a('v_add_u32 v2, s46, v2')
            a('v_cmp_gt_u32 vcc, 24, v1')
            a('s_nop 12')
            a('s_and_saveexec_b64 s[46:47], vcc')
            for qd in range(4):
                a(f'ds_write_b128 v2, {vr(KV0+4*qd,4)} offset:{768*qd}')
            a(f'ds_write_b128 v2, {vr(KV1,4)} offset:{768*4}')
            a('s_mov_b64 exec, s[46:47]')
            a('s_waitcnt lgkmcnt(0)')
        if cc == 1:
            a(f's_min_u32 s46, s{sWAVE}, 4')
            a('s_mul_i32 s46, s46, 768')
            a(f's_add_u32 s46, s46, {BS0}')
            a(f'v_add_u32 v2, s46, v{VL16}')
            for x in EX48: a(x)
            for w in range(8):
                a(f'ds_read_b128 {vr(GA+4*w,4)}, v2 offset:{4096*w}')
            a('s_waitcnt lgkmcnt(0)')
            for w in range(1, 8):
                for j in range(4):
                    a(f'v_add_f32 v{GA+j}, v{GA+j}, v{GA+4*w+j}')
            a(f's_mul_i32 s46, s{sFI}, 5120')
            a(f's_mul_i32 s47, s{sWAVE}, 768')
            a('s_add_u32 s46, s46, s47')
            a(f's_cmp_ge_u32 s{sWAVE}, 5')
            a(f's_cselect_b32 s46, {WS_KV_BYTES}, s46')
            vm.issue(f'buffer_store_dwordx4 {vr(GA,4)}, v{VL16}, s[{SRD_KV}:{SRD_KV+3}], s46 offen sc1', 'kvst')
            a('s_mov_b64 exec, -1')
            a(f's_add_u32 s45, s{sHEAD}, 96')
            a(f's_mul_i32 s45, s45, {HEAD_BYTES}')
            load_rows(X1, X2, RA, 45, 'qB')
        if cc == 2:
            a(f's_cmp_eq_u32 s{sWAVE}, 4')
            a('s_cbranch_scc0 L2_nof2')
            set_flag(WS_F2, sFI, T)
            a.label('L2_nof2')
            vm.wait('qB')
            featmap('q', X1, X2, PKR, PH)
            a(f'v_mov_b32 v{PH+10}, 0')
            a(f'v_mov_b32 v{PH+11}, 0')
        if cc == 3:
            p3role()
            a(f's_cmp_eq_u32 s{sWAVE}, 4')
            a('s_cbranch_scc0 L2_nopoll2')
            a(f's_lshl_b32 s46, s{sHEAD}, 3')
            a(f'v_add_u32 v{T+5}, s46, v0')
            a(f'v_lshlrev_b32 v{T+5}, 7, v{T+5}')
            a(f'v_add_u32 v{T+5}, {WS_F2-WS_FLG}, v{T+5}')
            a(f's_lshl_b32 s46, s{P3BR}, 3')
            a(f's_add_u32 s46, s46, s{P3CB}')
            a('s_mul_i32 s46, s46, 25')
            a(f'v_subrev_u32 v{T+6}, 8, v0')
            a(f'v_add_u32 v{T+6}, s46, v{T+6}')
            a(f'v_and_b32 v{T+6}, 255, v{T+6}')
            a(f'v_lshlrev_b32 v{T+6}, 7, v{T+6}')
            a('v_cmp_gt_u32 vcc, 8, v0')
            a('s_nop 1')
            a(f'v_cndmask_b32 v{T+5}, v{T+6}, v{T+5}, vcc')
            poll('kv', T+5, 33)
            a.label('L2_nopoll2')
        if cc == 4:
            a(f's_mul_i32 s46, s{sHEAD}, {8*5120}')
            a(f's_mul_i32 s47, s{sWAVE}, 768')
            a('s_add_u32 s46, s46, s47')
            a(f's_cmp_ge_u32 s{sWAVE}, 5')
            a(f's_cselect_b32 s46, {WS_KV_BYTES}, s46')
            for x in EX48: a(x)
            for b in range(8):
                vm.issue(f'buffer_load_dwordx4 {vr(GA+4*b,4)}, v{VL16}, s[{SRD_KV}:{SRD_KV+3}], s46 offen sc1', 'gather')
                a('s_add_u32 s46, s46, 5120')
            a('s_mov_b64 exec, -1')
            a(f's_lshl_b32 s44, s{P3BR}, 3')
            a(f's_add_u32 s44, s44, s{P3CB}')
            a('s_mul_i32 s44, s44, 102400')
            a(f's_and_b32 s45, s{P3RB}, 3')
            a('s_mul_i32 s45, s45, 25600')
            a('s_add_u32 s44, s44, s45')
            a(f's_mul_i32 s45, s{sWAVE}, 3200')
            a('s_add_u32 s44, s44, s45')
            a('v_lshlrev_b32 v2, 7, v0')
            a('s_mov_b64 exec, 0x1ffffff')
            vm.issue(f'buffer_load_dword v253, v2, s[{SRD_WO}:{SRD_WO+3}], s44 offen sc1', 'touch')
            a('s_mov_b64 exec, -1')
        if cc == 5:
            vm.wait('gather')
            for x in EX48: a(x)
            for b in range(1, 8):
                for j in range(4):
                    a(f'v_add_f32 v{GA+j}, v{GA+j}, v{GA+4*b+j}')
            a(f'v_cvt_pk_bf16_f32 v{T+20}, v{GA}, v{GA+1}')
            a(f'v_cvt_pk_bf16_f32 v{T+21}, v{GA+2}, v{GA+3}')
            a('v_cmp_le_u32 vcc, 24, v0')
            a('v_add_u32 v2, 8, v0')
            a('s_nop 0')
            a('v_cndmask_b32 v2, v0, v2, vcc')
            a('v_mul_u32_u24 v2, 48, v2')
            a(f's_lshl_b32 s46, s{sWAVE}, 3')
            a(f's_add_u32 s46, s46, {KVT0}')
            a('v_add_u32 v2, s46, v2')
            a(f's_cmp_ge_u32 s{sWAVE}, 6')
            a('s_cbranch_scc1 L2_notab')
            a(f'ds_write_b64 v2, {vr(T+20,2)}')
            a.label('L2_notab')
            a('s_mov_b64 exec, -1')
            a('s_waitcnt lgkmcnt(0)')
        if cc == 6:
            a('v_mul_u32_u24 v2, 48, v0')
            a(f'v_add_u32 v2, {KVT0}, v2')
            for u in range(3):
                a(f'ds_read_b128 {vr(AF+4*u,4)}, v2 offset:{16*u}')
            a('s_waitcnt lgkmcnt(0)')
            a(f'v_mfma_f32_32x32x16_bf16 {vr(PKR,16)}, {vr(AF,4)}, {vr(PH,4)}, 0')
            a(f'v_mfma_f32_32x32x16_bf16 {vr(PKR,16)}, {vr(AF+4,4)}, {vr(PH+4,4)}, {vr(PKR,16)}')
            a(f'v_mfma_f32_32x32x16_bf16 {vr(PKR,16)}, {vr(AF+8,4)}, {vr(PH+8,4)}, {vr(PKR,16)}')
            a('s_nop 15')
            store_o(PKR, 1, 1e-6, 'oB')
        if cc == 7:
            a(f's_cmp_eq_u32 s{sWAVE}, 4')
            a('s_cbranch_scc0 L2_nof4')
            set_flag(WS_F4, sFI, T)
            a.label('L2_nof4')
        if opt.get('p2sec') and cc in (0, 1, 2, 5, 6): stamp(f'e{cc}')
        a('s_branch L2_secret')

    a.label('L2_tail')
    stamp('P2loop')
    vm.q = []
    a('s_waitcnt lgkmcnt(0)')
    a(pv(1, 1, 1))
    a(f's_lshl_b32 s46, s{sWAVE}, 12')
    a(f's_add_u32 s46, s46, {MRG0}')
    a(f'v_add_u32 v2, s46, v{VL16}')
    a(f's_xor_b32 s47, s{sWAVE}, 4')
    a(f's_lshl_b32 s47, s47, 12')
    a(f's_add_u32 s47, s47, {MRG0}')
    a(f'v_add_u32 v3, s47, v{VL16}')
    a('s_barrier')
    a('s_nop 7')
    OW = T+16
    a(f's_cmp_eq_u32 s{sPAR}, 0')
    a('s_cbranch_scc0 L2_par1')
    for q in range(4): a(f'ds_write_b128 v2, {vr(O+16+4*q,4)} offset:{1024*q}')
    for j in range(16): a(f'v_mov_b32 v{OW+j}, v{O+j}')
    a('s_branch L2_pard')
    a.label('L2_par1')
    for q in range(4): a(f'ds_write_b128 v2, {vr(O+4*q,4)} offset:{1024*q}')
    for j in range(16): a(f'v_mov_b32 v{OW+j}, v{O+16+j}')
    a.label('L2_pard')
    a('s_waitcnt lgkmcnt(0)')
    a('s_barrier')
    for q in range(4): a(f'ds_read_b128 {vr(GA+4*q,4)}, v3 offset:{1024*q}')
    a('s_waitcnt lgkmcnt(0)')
    for j in range(16): a(f'v_add_f32 v{OW+j}, v{OW+j}, v{GA+j}')
    t0, t1, t2 = T+2, T+3, T+4
    a(f'v_mov_b32 v{t0}, v{OW+8}')
    a(f'v_mov_b32 v{t1}, v{OW+8}')
    a(f'v_mov_b32 v{t2}, 0')
    a(f'v_permlane32_swap_b32 v{t0}, v{t1}')
    for j in range(12):
        a(f'v_fma_f32 v{t2}, v{OW+j}, 0, v{t2}')
    a(f's_mov_b32 s{sTMP}, 0x1f800000')
    a(f's_mov_b32 s{sTMP+1}, 0x5f800000')
    a(f'v_cmp_nle_f32 vcc, s{sTMP}, v{t1}')
    a(f'v_cmp_nge_f32 s[{sTMP+2}:{sTMP+3}], s{sTMP+1}, v{t1}')
    a(f'v_cmp_u_f32 s[{sTMP+4}:{sTMP+5}], v{t2}, v{t2}')
    a('s_nop 1')
    a(f's_or_b64 vcc, vcc, s[{sTMP+2}:{sTMP+3}]')
    a(f's_or_b64 vcc, vcc, s[{sTMP+4}:{sTMP+5}]')
    a(f's_cmp_lg_u64 vcc, 0')
    a(f's_cselect_b32 s{sTMP}, 1, {1 if force_slow else 0}')
    a(f'v_mov_b32 v{t0}, s{sTMP}')
    a(f's_lshl_b32 s{sTMP+1}, s{sWAVE}, 2')
    a(f's_add_u32 s{sTMP+1}, s{sTMP+1}, {FLAG0}')
    a(f'v_mov_b32 v{t1}, s{sTMP+1}')
    a(f'ds_write_b32 v{t1}, v{t0}')
    a('s_waitcnt lgkmcnt(0)')
    a('s_barrier')
    a(f'v_mov_b32 v{t1}, {FLAG0}')
    a(f'ds_read_b128 {vr(GA,4)}, v{t1}')
    a(f'ds_read_b128 {vr(GA+4,4)}, v{t1} offset:16')
    a('s_waitcnt lgkmcnt(0)')
    for j in range(1, 8):
        a(f'v_or_b32 v{GA}, v{GA}, v{GA+j}')
    a('s_nop 0')
    a(f'v_readfirstlane_b32 s{sTMP}, v{GA}')
    a(f's_cmp_lg_u32 s{sTMP}, 0')
    a('s_cbranch_scc1 L2_slow')
    a.label('L2_adone')
    stamp('merged')
    store_o(OW, 0, None, 'oA')
    a(f's_lshl_b32 s44, s{P3BR}, 3')
    a(f's_add_u32 s44, s44, s{P3CB}')
    a('s_mul_i32 s44, s44, 102400')
    a(f's_lshl_b32 s45, s{sWAVE}, 10')
    a('s_add_u32 s44, s44, s45')
    for i in range(13):
        if i == 12:
            a(f's_cmp_ge_u32 s{sWAVE}, 4')
            a(f's_cselect_b32 s44, {WS_WO_BYTES}, s44')
            a(f's_cselect_b32 s45, {136192-12*8192}, s45')
        a(f's_add_u32 m0, s45, {8192*i}')
        a(f's_add_u32 s46, s44, {8192*i}')
        vm.issue(f'buffer_load_dwordx4 v{VL16}, s[{SRD_WO}:{SRD_WO+3}], s46 offen sc1 lds', 'wo')
    vm.wait('oA')
    a('s_barrier')
    stamp('S2a')

    a(f's_cmp_eq_u32 s{sWAVE}, 4')
    a('s_cbranch_scc0 L3_nosync')
    set_flag(WS_F3, sFI, T)
    a(f's_lshr_b32 s46, s{P3RB}, 1')
    a(f'v_lshl_add_u32 v{T+5}, v0, 3, s46')
    a(f'v_lshlrev_b32 v{T+5}, 7, v{T+5}')
    a(f's_lshl_b32 s46, s{P3BR}, 16')
    a(f's_add_u32 s46, s46, {WS_F3-WS_FLG}')
    a(f'v_add_u32 v{T+5}, s46, v{T+5}')
    poll('s2', T+5, 32)
    a.label('L3_nosync')
    OF, ACC3, WF3 = 8, 168, 208
    a('v_lshlrev_b32 v1, 4, v0')
    a('v_add_u32 v3, 61440, v1')
    a(f's_lshl_b32 s23, s{P3BR}, 7')
    a(f's_lshl_b32 s24, s{P3RB}, 3')
    a('s_add_u32 s23, s23, s24')
    a('s_mul_i32 s23, s23, 20480')
    make_srd(a, 12, pOUT, pOUT+1, 2048*1280*2)
    a('s_waitcnt vmcnt(0)')
    a('s_barrier')
    stamp('S2b')
    a(f's_cmp_ge_u32 s{sWAVE}, 4')
    a('s_cbranch_scc0 L3_compute')
    a(f's_mul_i32 s24, s{P3CB}, 160')
    a(f's_sub_u32 s25, s{sWAVE}, 4')
    a('s_mul_i32 s25, s25, 40')
    a('s_add_u32 s24, s24, s25')
    a('v_add_u32 v2, s24, v0')
    a('v_lshlrev_b32 v2, 7, v2')
    a('s_mov_b32 exec_hi, 0xff')
    a(f'buffer_load_dword v4, v2, s[{SRD_O}:{SRD_O+3}], s23 offen sc1')
    a('s_mov_b64 exec, -1')
    a('s_barrier')
    a('s_branch L_fin')
    a.label('L3_compute')
    a(f's_lshl_b32 s24, s{sWAVE}, 1')
    a('s_mul_i32 s24, s24, 20480')
    a('s_add_u32 s23, s23, s24')
    a('s_barrier')
    vm = VMQ(a)
    for ks in range(20):
        for tm in range(2):
            a(f's_add_u32 s29, s23, {tm*20480 + ks*1024}')
            vm.issue(f'buffer_load_dwordx4 {vr(OF+8*ks+4*tm,4)}, v1, s[{SRD_O}:{SRD_O+3}], s29 offen sc1', f'o{ks}')
    def wreads(ks, st):
        out = []
        for ct in range(5):
            off = (ks*5+ct)*1024
            out.append(f'ds_read_b128 {vr(WF3+20*st+4*ct,4)}, v1 offset:{off}' if off < 61440 else f'ds_read_b128 {vr(WF3+20*st+4*ct,4)}, v3 offset:{off-61440}')
        return out
    for r in wreads(0, 0): a(r)
    for ks in range(20):
        st = ks % 2
        nxt = wreads(ks+1, 1-st) if ks+1 < 20 else []
        vm.wait(f'o{ks}', ' lgkmcnt(0)')
        m = 0
        for ct in range(5):
            for tm in range(2):
                acc = ACC3 + 20*tm + 4*ct
                c = '0' if ks == 0 else vr(acc,4)
                a(f'v_mfma_f32_16x16x32_bf16 {vr(acc,4)}, {vr(WF3+20*st+4*ct,4)}, {vr(OF+8*ks+4*tm,4)}, {c}')
                if m < len(nxt): a(nxt[m])
                m += 1
    stamp('P3loop')
    a('v_and_b32 v2, 15, v0')
    a('v_lshrrev_b32 v3, 4, v0')
    a('v_mul_u32_u24 v2, 160, v2')
    a('v_lshl_add_u32 v2, v3, 3, v2')
    a(f's_mul_i32 s28, s{sWAVE}, 5120')
    a(f's_add_u32 s28, s28, {STG0}')
    a('v_add_u32 v2, s28, v2')
    a('s_nop 7')
    for tm in range(2):
        for ct in range(5):
            acc = ACC3 + 20*tm + 4*ct
            d = 16 + 2*(tm*5+ct)
            a(f'v_cvt_pk_bf16_f32 v{d}, v{acc}, v{acc+1}')
            a(f'v_cvt_pk_bf16_f32 v{d+1}, v{acc+2}, v{acc+3}')
            a(f'ds_write_b64 v2, {vr(d,2)} offset:{tm*2560 + ct*32}')
    a('s_mov_b32 s29, 0x1999999a')
    a(f's_lshl_b32 s30, s{P3RB}, 7')
    a(f's_lshl_b32 s31, s{sWAVE}, 5')
    a('s_add_u32 s30, s30, s31')
    a('s_mul_i32 s30, s30, 2560')
    a(f's_mul_i32 s31, s{P3BR}, 1280')
    a('s_add_u32 s30, s30, s31')
    a(f's_mul_i32 s31, s{P3CB}, 160')
    a('s_add_u32 s30, s30, s31')
    for i in range(5):
        a(f'v_add_u32 v4, {64*i}, v0')
        a('v_mul_hi_u32 v5, v4, s29')
        a('v_mul_u32_u24 v6, 10, v5')
        a('v_sub_u32 v6, v4, v6')
        a('v_mul_u32_u24 v5, 2560, v5')
        a(f'v_lshl_add_u32 v{40+i}, v6, 4, v5')
        a(f'v_lshlrev_b32 v4, 4, v4')
        a(f'v_add_u32 v{48+i}, s28, v4')
    a('s_waitcnt lgkmcnt(0)')
    for i in range(5):
        a(f'ds_read_b128 {vr(56+4*i,4)}, v{48+i}')
    for i in range(5):
        a(f's_waitcnt lgkmcnt({4-i})')
        a(f'buffer_store_dwordx4 {vr(56+4*i,4)}, v{40+i}, s[12:15], s30 offen')
    a.label('L_fin')
    if diag:
        a('s_waitcnt vmcnt(0)')
        stamp('end')
        a('s_memrealtime s[92:93]')
        a('s_waitcnt lgkmcnt(0)')
        a('s_sub_u32 s92, s92, s90')
        a(f'v_writelane_b32 v255, s92, 62')
        a(f'v_writelane_b32 v255, s90, 63')
        make_srd(a, 16, pWS, pWS+1, 0x100000, add=WS_DIAG)
        a('s_lshl_b32 s44, s2, 3')
        a(f's_add_u32 s44, s44, s{sWAVE}')
        a('s_lshl_b32 s44, s44, 8')
        a('v_lshlrev_b32 v1, 2, v0')
        a('buffer_store_dword v255, v1, s[16:19], s44 offen')
        a('s_waitcnt vmcnt(0)')
        kernel.stamps = stamps
    a('s_endpgm')

    a.label('L2_slow')
    M, AL, MT, MT2 = T+10, T+11, T+12, T+13
    a('s_waitcnt vmcnt(0) lgkmcnt(0)')
    for j in range(16):
        a(f'v_mov_b32 v{O+j}, 0')
    a(f'v_mov_b32 v{M}, 0xff7fffff')
    a(f's_cmp_eq_u32 s{sPAR}, 0')
    a('s_cbranch_scc1 L2_slow_q0')
    for j in range(4):
        a(f'v_mov_b32 v{Q1+j}, v{Q1+4+j}')
        a(f'v_mov_b32 v{Q2+j}, v{Q2+4+j}')
    a.label('L2_slow_q0')
    main_addresses(False)
    a(f's_mov_b32 s{sC}, 0')
    a.label('L2_slow_chunk')
    a('s_barrier')
    a(f's_lshl_b32 s{sGC}, s{sC}, 12')
    for i in range(3):
        a(f's_mov_b32 m0, s{sL+i}')
        a(f's_add_u32 s{sTMP}, s{sG+i}, s{sGC}')
        a(f'buffer_load_dwordx4 v{VL16}, {QS}, s{sTMP} offen sc1 lds')
    a('s_waitcnt vmcnt(0)')
    a('s_barrier')
    a(f's_mov_b32 s{sD}, 0')
    a(f'v_mov_b32 v{VKN}, v{VK}')
    a(f'v_mov_b32 v{VK2N}, v{VK2}')
    a(f'v_mov_b32 v{VVN}, v{VV}')
    a.label('L2_slow_tile')
    for r in kreads(0, 0, True): a(r)
    for r in vreads(0, 0, True): a(r)
    a('s_waitcnt lgkmcnt(0)')
    a(qk1(0, 0, 0)); a(qk2(0, 0, 0))
    a('s_nop 15')
    a(f'v_max3_f32 v{MT}, v{S}, v{S+1}, v{S+2}')
    for j in range(3, 15, 2):
        a(f'v_max3_f32 v{MT}, v{MT}, v{S+j}, v{S+j+1}')
    a(f'v_max_f32 v{MT}, v{MT}, v{S+15}')
    a(f'v_mov_b32 v{MT2}, v{MT}')
    a('s_nop 1')
    a(f'v_permlane32_swap_b32 v{MT}, v{MT2}')
    a('s_nop 1')
    a(f'v_max3_f32 v{MT}, v{MT}, v{MT2}, v{M}')
    a(f'v_sub_f32 v{AL}, v{M}, v{MT}')
    a(f'v_exp_f32 v{AL}, v{AL}')
    a(f'v_mov_b32 v{M}, v{MT}')
    for j in range(16):
        a(f'v_sub_f32 v{S+j}, v{S+j}, v{MT}')
    for j in range(16):
        a(f'v_exp_f32 v{S+j}, v{S+j}')
    for j in range(16):
        a(f'v_mul_f32 v{O+j}, v{O+j}, v{AL}')
    for j in range(8):
        a(f'v_cvt_pk_bf16_f32 v{P+j}, v{S+2*j}, v{S+2*j+1}')
    a('s_nop 1')
    a(pv(0, 0, 0)); a(pv(1, 0, 0))
    a('s_nop 15')
    a(f'v_add_u32 v{VKN}, 512, v{VKN}')
    a(f'v_add_u32 v{VK2N}, 512, v{VK2N}')
    a(f'v_add_u32 v{VVN}, 512, v{VVN}')
    a(f's_add_u32 s{sD}, s{sD}, 1')
    a(f's_cmp_lt_u32 s{sD}, 8')
    a('s_cbranch_scc1 L2_slow_tile')
    a(f's_add_u32 s{sC}, s{sC}, 1')
    a(f's_cmp_lt_u32 s{sC}, {NCH}')
    a('s_cbranch_scc1 L2_slow_chunk')
    for j in range(16):
        a(f'v_mov_b32 v{OW+j}, v{O+j}')
    a('s_barrier')
    a('s_branch L2_adone')
    a.label('L_end')
    a('s_endpgm')
    return a.text()

def build(diag=False, force_slow=False, dst='fused.s', opt=None):
    header = open('concat_heads__softmax_full_mha__linear_kernel_hedgehog__prompt.s.ref').read().split('; Override launch')[0]
    out = header + f'; @launch grid=(256,1,1) block=(512,1,1) lds={LDS}\n'
    out += '.amdgcn_target "amdgcn-amd-amdhsa--gfx950"\n.text\n' + kernel(diag, force_slow, opt)
    out += '.section .rodata,"a"\n.p2align 6\n' + kernel_desc(NAME, 256)
    open(dst, 'w').write(out)
    return dst

if __name__ == '__main__':
    build(False, False, 'f2.s')
    build(True, False, 'f2_diag.s')
    build(True, False, 'f2_rt.s', {'rt': 1})
    build(True, False, 'f2_st.s', {'rt': 1, 'p1stages': 1})
    print(kernel.stamps)
    build(True, False, 'f2_nt.s', {'rt': 1, 'p1stages': 1, 'notouch': 1})
    build(True, False, 'f2_sec.s', {'rt': 1, 'p2sec': 1})
    print(kernel.stamps)
    print(kernel.stamps)
    build(False, True, 'f2_slow.s')
```
